```python
import torch

def _softmax(x, axis=-1):
    return torch.softmax(x, dim=axis)

def _gelu(x):
    return torch.nn.functional.gelu(x, approximate='tanh')

def _silu(x):
    return torch.nn.functional.silu(x)

def _sigmoid(x):
    return torch.sigmoid(x)

def _layernorm(x, axis=-1, eps=1e-05):
    m = x.mean(dim=axis, keepdim=True)
    v = x.var(dim=axis, keepdim=True, unbiased=False)
    return (x - m) / torch.sqrt(v + eps)

def _scatter_add(tgt, idx, src, axis=0):
    return tgt.clone().index_add_(axis, idx, src)

def _segment_sum(src, seg, n):
    out = torch.zeros((n,) + src.shape[1:], dtype=src.dtype)
    return out.index_add_(0, seg, src)

def _pad(x, pw):
    flat = tuple((v for pair in reversed(pw) for v in pair))
    return torch.nn.functional.pad(x, flat)
kernel_name = 'adaLN_cond__compressed_kv_cla__dense_activation_relu__decode'

def setup_inputs():

    _w = lambda a: (lambda t: t.to(torch.bfloat16) if t.is_floating_point() else t)(torch.as_tensor(a))

    def _A_setup():
        B, H, Sq, Sk, D, M = (2, 32, 1, 8192, 128, 512)
        Dc = 4 * D
        return {'x': _w((lambda *s: torch.randn(*s, dtype=torch.bfloat16) * 0.05)(B, Sq, M)), 'c_kv': _w((lambda *s: torch.randn(*s, dtype=torch.bfloat16) * 1.6)(B, Sk, Dc)), 'w_q': _w((lambda *s: torch.randn(*s, dtype=torch.bfloat16) * 1.6)(M, H, D) * M ** (-0.5)), 'w_uk': _w((lambda *s: torch.randn(*s, dtype=torch.bfloat16) * 1.6)(Dc, H, D) * Dc ** (-0.5)), 'w_uv': _w((lambda *s: torch.randn(*s, dtype=torch.bfloat16) * 1.6)(Dc, H, D) * Dc ** (-0.5)), 'w_o': _w((lambda *s: torch.randn(*s, dtype=torch.bfloat16) * 1.6)(H, D, M) * (H * D) ** (-0.5))}
    _A_in = _A_setup()

    def _B_setup():
        B, S, D, Dff = (2, 1, 512, 1792)
        return {'x': _w((lambda *s: torch.randn(*s, dtype=torch.bfloat16) * 0.05)(B, S, D)), 'w1': _w((lambda *s: torch.randn(*s, dtype=torch.bfloat16) * 0.05)(D, Dff)), 'w2': _w((lambda *s: torch.randn(*s, dtype=torch.bfloat16) * 0.05)(Dff, D))}
    _B_in = _B_setup()
    return {'A_x': _A_in['x'], 'A_c_kv': _A_in['c_kv'], 'A_w_q': _A_in['w_q'], 'A_w_uk': _A_in['w_uk'], 'A_w_uv': _A_in['w_uv'], 'A_w_o': _A_in['w_o'], 'B_x': _B_in['x'], 'B_w1': _B_in['w1'], 'B_w2': _B_in['w2'], 'c': _w((lambda *s: torch.randn(*s, dtype=torch.bfloat16) * 0.2)(2, 512) * 8.0), 'w_mod': _w((lambda *s: torch.randn(*s, dtype=torch.bfloat16) * 0.2)(512, 6 * 512) * 512 ** (-0.5) * 8.0)}

def reference(A_x, A_c_kv, A_w_q, A_w_uk, A_w_uv, A_w_o, B_x, B_w1, B_w2, c, w_mod):

    def _A_ref(x, c_kv, w_q, w_uk, w_uv, w_o):
        B, Sq, M = (x.shape[0], x.shape[1], x.shape[2])
        Sk = c_kv.shape[1]
        H, D = (w_q.shape[1], w_q.shape[2])
        q = torch.einsum('bqm,mhd->bhqd', x, w_q)
        k = torch.einsum('bkc,chd->bhkd', c_kv, w_uk)
        v = torch.einsum('bkc,chd->bhkd', c_kv, w_uv)
        scores = torch.einsum('bhqd,bhkd->bhqk', q, k) * D ** (-0.5)
        off = Sk - Sq
        qi = torch.arange(Sq)[:, None]
        kj = torch.arange(Sk)[None, :]
        cmask = kj <= qi + off
        scores = torch.where(cmask[None, None], scores, -1000000000.0)
        p = _softmax(scores, axis=-1)
        ctx = torch.einsum('bhqk,bhkd->bhqd', p, v)
        return torch.einsum('bhqd,hdm->bqm', ctx, w_o)

    def _B_ref(x, w1, w2):
        h = torch.einsum('bsd,df->bsf', x, w1)
        zero = torch.zeros_like(h)
        h = torch.maximum(h, zero)
        return torch.einsum('bsf,fd->bsd', h, w2)
    x = A_x
    mod = (_silu(c) @ w_mod).reshape(c.shape[0], 6, 1, -1)
    sa, ca, ga, sb, cb, gb = (mod[:, 0].clone(), mod[:, 1].clone(), mod[:, 2].clone(), mod[:, 3].clone(), mod[:, 4].clone(), mod[:, 5].clone())
    h = _layernorm(x, axis=-1) * (1 + ca) + sa
    x = x + ga * _A_ref(h, A_c_kv, A_w_q, A_w_uk, A_w_uv, A_w_o)
    h = _layernorm(x, axis=-1) * (1 + cb) + sb
    x = x + gb * _B_ref(h, B_w1, B_w2)
    return x
```

```python
import re

TRANS = ('v_exp_', 'v_log_', 'v_rcp_', 'v_rsq_', 'v_sqrt_', 'v_sin_', 'v_cos_')
REG = re.compile(r'^-?\|?([vsa])(?:(\d+)|\[(\d+):(\d+)\])\|?$')


def regs(op):
    op = op.strip()
    if op in ('vcc', 'vcc_lo', 'vcc_hi'):
        return {'vcc'}
    if op in ('exec', 'exec_lo', 'exec_hi'):
        return {'exec'}
    if op == 'm0':
        return {'m0'}
    m = REG.match(op)
    if not m:
        return set()
    k = m.group(1)
    if m.group(2) is not None:
        return {k + m.group(2)}
    return {k + str(i) for i in range(int(m.group(3)), int(m.group(4)) + 1)}


def vonly(s):
    return {r for r in s if r[0] in 'va' and r != 'vcc'}


def sonly(s):
    return {r for r in s if r[0] == 's' or r == 'vcc'}


class Ins:
    def __init__(self, text):
        self.text = text
        t = text.split(';')[0].strip()
        self.label = t[:-1] if t.endswith(':') else None
        self.directive = t.startswith('.') and not self.label
        self.mn = ''
        self.defs = set(); self.uses = set()
        self.kind = 'other'
        self.ws = 1
        self.target = None
        if self.label or self.directive or not t:
            self.ws = 0
            return
        p = t.split(None, 1)
        mn = self.mn = p[0]
        rest = p[1] if len(p) > 1 else ''
        ops = [o.strip() for o in re.split(r',(?![^\[]*\])', rest)] if rest else []
        mods = ''
        if ops:
            q = ops[-1].split(None, 1)
            ops[-1] = q[0]
            mods = q[1] if len(q) > 1 else ''
        self.ops = ops; self.mods = mods
        R = [regs(o) for o in ops]
        U = lambda xs: set().union(*xs) if xs else set()
        if mn == 's_nop':
            self.ws = int(ops[0], 0) + 1
        elif mn.startswith('v_mfma'):
            self.kind = 'mfma'
            self.defs = R[0]; self.a = R[1]; self.b = R[2]; self.c = R[3]
            self.uses = U(R[1:])
            self.passes = 8 if '32x32x16' in mn else 4
        elif mn.startswith('v_'):
            self.kind = 'valu'
            self.trans = mn.startswith(TRANS)
            self.dpp = '_dpp' in mn
            self.perm = mn.startswith('v_permlane')
            self.rl = mn.startswith(('v_readlane', 'v_readfirstlane'))
            self.defs = set(R[0]); self.uses = U(R[1:])
            if self.perm:
                self.defs = U(R[:2]); self.uses = U(R[:2])
            if mn.startswith('v_cmpx'):
                self.defs |= {'exec'}
            if '_co_' in mn:
                self.defs |= R[1]
            if self.dpp or mn.startswith(('v_fmac', 'v_mac', 'v_dot2c', 'v_writelane')):
                self.uses |= R[0]
        elif mn.startswith('buffer_'):
            self.kind = 'vmem'
            self.lds = bool(re.search(r'\blds\b', mods))
            self.wide = False
            if mn.startswith('buffer_load') and not self.lds:
                self.defs = R[0]; self.uses = U(R[1:])
            else:
                self.uses = U(R)
                if self.lds:
                    self.uses |= {'m0'}
                elif mn.endswith(('x3', 'x4')):
                    self.wide = True; self.data = R[0]
        elif mn.startswith('ds_'):
            self.kind = 'ds'
            if mn.startswith(('ds_read', 'ds_bpermute', 'ds_permute', 'ds_swizzle')):
                self.defs = R[0]; self.uses = U(R[1:])
            else:
                self.uses = U(R)
        elif mn.startswith(('s_cbranch', 's_branch')):
            self.kind = 'branch'
            self.target = ops[0]
        elif mn.startswith('s_'):
            self.kind = 'salu'
            if ops and not mn.startswith(('s_cmp', 's_bitcmp', 's_waitcnt', 's_setprio', 's_sleep')):
                self.defs = set(R[0]); self.uses = U(R[1:])
                if 'saveexec' in mn:
                    self.defs |= {'exec'}


def need(p, c):
    n = 0
    if p.kind == 'valu':
        pv = vonly(p.defs); ps = sonly(p.defs)
        if c.kind == 'mfma':
            if pv & c.uses: n = max(n, 2)
            if 'exec' in p.defs: n = max(n, 4)
        if c.kind == 'valu':
            if pv & c.uses:
                if c.dpp or c.perm: n = max(n, 2)
                if c.rl: n = max(n, 1)
                if p.trans: n = max(n, 1)
            if ps & c.uses:
                n = max(n, 4 if c.mn.startswith(('v_readlane', 'v_writelane')) else 2)
            if 'exec' in p.defs:
                if c.dpp: n = max(n, 5)
                if c.rl or c.perm: n = max(n, 4)
                if 'exec' in c.uses: n = max(n, 2)
        if c.kind == 'vmem' and ps & c.uses:
            n = max(n, 5)
    if p.kind == 'mfma':
        big = p.passes == 8
        if c.kind == 'mfma':
            if p.defs & (c.a | c.b): n = max(n, 12 if big else 8)
            if p.defs & c.c and not (p.defs == c.c and p.mn == c.mn): n = max(n, 10 if big else 6)
            if p.defs & c.defs and not (p.defs == c.c and p.mn == c.mn): n = max(n, 10 if big else 6)
        elif c.kind in ('valu', 'vmem', 'ds'):
            if p.defs & (c.uses | c.defs): n = max(n, 12 if big else 8)
            if c.kind == 'valu' and p.c & c.defs: n = max(n, 7 if big else 3)
    if p.kind == 'salu' and 'm0' in p.defs and c.kind == 'vmem' and c.lds:
        n = max(n, 1)
    if p.kind == 'vmem' and p.wide and p.data & c.defs:
        n = max(n, 2 if c.kind in ('valu', 'mfma') else 1)
    return n


def fix_hazards(lines):
    ins = [Ins(l) for l in lines]
    changed = True
    while changed:
        changed = False
        labels = {x.label: i for i, x in enumerate(ins) if x.label}
        srcs = {}
        for i, x in enumerate(ins):
            if x.kind == 'branch' and x.target in labels:
                srcs.setdefault(labels[x.target], []).append(i)

        def preds(i):
            r = []
            if i > 0 and ins[i - 1].mn not in ('s_branch', 's_endpgm'):
                r.append(i - 1)
            r += srcs.get(i, [])
            return r
        for i, c in enumerate(ins):
            if c.kind not in ('valu', 'mfma', 'vmem', 'ds'):
                continue
            short = 0
            stack = [(p, 0) for p in preds(i)]
            seen = {}
            while stack:
                p, d = stack.pop()
                if d >= 12 or seen.get(p, 99) <= d:
                    continue
                seen[p] = d
                short = max(short, need(ins[p], c) - d)
                stack += [(q, d + ins[p].ws) for q in preds(p)]
            if short > 0:
                ins.insert(i, Ins(f's_nop {short - 1}'))
                changed = True
                break
    return [x.text for x in ins]


class Asm:
    def __init__(self):
        self.l = []
        self.n = 0

    def __call__(self, s):
        for x in s.strip('\n').split('\n'):
            x = x.strip()
            if x:
                self.l.append(x)

    def label(self, base):
        self.n += 1
        return f'L{base}_{self.n}'

    def text(self):
        out = []
        for x in fix_hazards(self.l):
            out.append(x if x.endswith(':') else '    ' + x)
        return '\n'.join(out)


def v(a, n=1):
    return f'v{a}' if n == 1 else f'v[{a}:{a + n - 1}]'


def s(a, n=1):
    return f's{a}' if n == 1 else f's[{a}:{a + n - 1}]'
```

```python
import sys, struct, math
sys.path.insert(0, 'work')
from asmlib import Asm, v, s

NAME = 'adaLN_cond__compressed_kv_cla__dense_activation_relu__decode'
KN = NAME + '_kernel'

FLAGS, E1, MOD2, E5, E3, E2 = 0x1000, 0x2000, 0xA000, 0xC000, 0x10000, 0x20000
GATE, H2, E7, H1, STAMP = 0x40000, 0x50000, 0x60000, 0x100000, 0x600000
WS_BYTES = 0x500000
PHI = 0x9E3779B9
SPIN = 40000
OOB = 0x7FF00000

WS, XS, CS, WM, S0, S1, S2, S3 = 4, 8, 12, 16, 20, 24, 28, 32
TAG, SW, SX, SJ, SPN = 40, 41, 42, 43, 44
DPPM = 'row_mask:0xf bank_mask:0xf'
X1, X2 = 'quad_perm:[1,0,3,2]', 'quad_perm:[2,3,0,1]'


def f32(x):
    return '0x%08x' % struct.unpack('<I', struct.pack('<f', x))[0]


class LQ:
    def __init__(self, a):
        self.a = a; self.q = []

    def issue(self, text, tag=None):
        self.a(text); self.q.append(tag)
        assert len(self.q) <= 15, 'too many LDS ops in flight'

    def wait(self, tag):
        if tag not in self.q:
            return
        i = len(self.q) - 1 - self.q[::-1].index(tag)
        self.a(f's_waitcnt lgkmcnt({len(self.q) - 1 - i})')
        self.q = self.q[i + 1:]

    def drain(self):
        self.a('s_waitcnt lgkmcnt(0)'); self.q = []


class G:
    def __init__(self, stamps=False):
        self.a = Asm()
        self.stamps = stamps

    def srd(self, r, off, size):
        self.a(f's_load_dwordx2 {s(r, 2)}, s[0:1], {off}')
        self.pend.append(f's_mov_b32 s{r + 2}, {size}\ns_mov_b32 s{r + 3}, 0x20000')

    def stamp(self, i):
        if self.stamps:
            self.a(f's_memrealtime {s(64 + 2 * i, 2)}')

    def end(self):
        self.a('s_branch Lstamps' if self.stamps else 's_endpgm')

    def execm(self, lo, hi=None):
        hi = lo if hi is None else hi
        if lo == -1 and hi == -1:
            self.a('s_mov_b64 exec, -1')
        else:
            self.a(f's_mov_b32 exec_lo, {lo:#x}\ns_mov_b32 exec_hi, {hi:#x}')

    def dma(self, srd, vo, n, m0step, sostep, so, flag='nt'):
        a = self.a
        L = a.label('dma')
        a(f's_mov_b32 s3, {n}\n{L}:')
        for r, imm in vo:
            a(f'buffer_load_dwordx4 v{r}, {s(srd, 4)}, s{so} offen offset:{imm} {flag} lds')
        a(f's_add_u32 m0, m0, {m0step}\ns_add_u32 s{so}, s{so}, {sostep}')
        a(f's_sub_u32 s3, s3, 1\ns_cmp_lg_u32 s3, 0\ns_cbranch_scc1 {L}')

    def poll(self, loads, check):
        a = self.a
        L, D = a.label('poll'), a.label('done')
        a(f's_mov_b32 s{SPN}, {SPIN}\n{L}:')
        loads()
        check()
        a(f's_cbranch_vccz {D}\ns_sub_u32 s{SPN}, s{SPN}, 1\ns_cbranch_scc0 {L}\n{D}:')

    def chk_sent(self, rs, t):
        a = self.a
        rs = list(rs)
        if len(rs) == 1:
            a(f'v_cmp_eq_u32 vcc, -1, v{rs[0]}')
            return
        if len(rs) % 2 == 0:
            a(f'v_max_u32 v{t}, v{rs[0]}, v{rs[1]}'); rs = rs[2:]
        else:
            a(f'v_max3_u32 v{t}, v{rs[0]}, v{rs[1]}, v{rs[2]}'); rs = rs[3:]
        while rs:
            a(f'v_max3_u32 v{t}, v{t}, v{rs[0]}, v{rs[1]}'); rs = rs[2:]
        a(f'v_cmp_eq_u32 vcc, -1, v{t}')

    def chk_tag(self, rs, t):
        a = self.a
        a(f'v_xor_b32 v{t}, s{TAG}, v{rs[0]}')
        for r in rs[1:]:
            a(f'v_bitop3_b32 v{t}, v{r}, s{TAG}, v{t} bitop3:0xbe')
        a(f'v_cmp_ne_u32 vcc, 0, v{t}')

    def red16(self, op, rs):
        for m in (X1, X2, 'row_half_mirror', 'row_mirror'):
            for r in rs:
                self.a(f'{op}_dpp v{r}, v{r}, v{r} {m} {DPPM}')

    def unpack4(self, d, src):
        a = self.a
        a(f'v_lshlrev_b32 v{d}, 16, v{src}\nv_and_b32 v{d + 1}, 0xffff0000, v{src}')
        a(f'v_lshlrev_b32 v{d + 2}, 16, v{src + 1}\nv_and_b32 v{d + 3}, 0xffff0000, v{src + 1}')

    def silu(self, src, t, addr):
        a = self.a
        self.unpack4(t, src)
        for i in range(4):
            a(f'v_mul_f32 v{t + 4 + i}, {f32(-math.log2(math.e))}, v{t + i}')
        for i in range(4):
            a(f'v_exp_f32 v{t + 4 + i}, v{t + 4 + i}')
        for i in range(4):
            a(f'v_add_f32 v{t + 4 + i}, 1.0, v{t + 4 + i}')
        for i in range(4):
            a(f'v_rcp_f32 v{t + 4 + i}, v{t + 4 + i}')
        for i in range(4):
            a(f'v_mul_f32 v{t + i}, v{t + i}, v{t + 4 + i}')
        a(f'v_cvt_pk_bf16_f32 v{t + 4}, v{t}, v{t + 1}\nv_cvt_pk_bf16_f32 v{t + 5}, v{t + 2}, v{t + 3}')
        a(f'ds_write_b64 v{addr}, {v(t + 4, 2)}')

    def gemv64(self, nk, aaddr, baddr, acc, fa, fb, c0):
        q = LQ(self.a)
        depth = min(nk, 4)

        def rd(k):
            r = k % 5
            q.issue(f'ds_read_b64_tr_b16 {v(fa + 4 * r, 2)}, v{aaddr} offset:{k * 2048}')
            q.issue(f'ds_read_b64_tr_b16 {v(fa + 4 * r + 2, 2)}, v{aaddr} offset:{k * 2048 + 256}')
            q.issue(f'ds_read_b128 {v(fb + 4 * r, 4)}, v{baddr} offset:{k * 64}', k)
        for k in range(depth):
            rd(k)
        for k in range(nk):
            q.wait(k)
            r = k % 5
            c = c0 if k == 0 else v(acc, 4)
            self.a(f'v_mfma_f32_16x16x32_bf16 {v(acc, 4)}, {v(fa + 4 * r, 4)}, {v(fb + 4 * r, 4)}, {c}')
            if k + depth < nk:
                rd(k + depth)

    def preread(self, items):
        q = LQ(self.a)
        for i, t in enumerate(items):
            if len(q.q) == 15:
                q.wait(q.q[7])
            q.issue(t, i)

    def fold2(self, d0, d1, x):
        a = self.a
        for r in range(4):
            a(f'v_add_f32_dpp v{x + r}, v{d0 + r}, v{d0 + r} row_shl:4 row_mask:0xf bank_mask:0x1')
        for r in range(4):
            a(f'v_add_f32_dpp v{x + r}, v{d1 + r}, v{d1 + r} row_shr:4 row_mask:0xf bank_mask:0x2')
        for r in range(4):
            a(f'v_add_f32_dpp v{x + r}, v{x + r}, v{x + r} {X1} {DPPM}')

    def entry(self):
        a = self.a
        a('s_cmp_lt_u32 s2, 0x100\ns_cbranch_scc1 Lrun\ns_endpgm\nLrun:')
        self.stamp(0)
        self.pend = []
        self.srd(WS, 104, 0x700000 if self.stamps else WS_BYTES)
        a(f's_lshr_b32 s{SJ}, s2, 3\ns_and_b32 s{SX}, s2, 7')
        a(f'v_lshrrev_b32 v1, 6, v0\nv_and_b32 v2, 63, v0')
        a(f'v_readfirstlane_b32 s{SW}, v1')
        a('\n'.join(self.pend))
        a(f'v_and_b32 v3, 15, v0\nv_lshrrev_b32 v4, 4, v2')
        a(f's_cmp_lt_u32 s{SJ}, 16\ns_cbranch_scc1 Lrole_a')

    def role_t(self):
        a = self.a
        L_, JJ, GG = 2, 3, 4
        WQ, WUK, WUV, WO = S0, S1, S2, S3
        LWQ, LMOD, LWUV, LWO, LSIL, LCC, LAL, LDUMP = 0, 32768, 65536, 98304, 131072, 133376, 134144, 135168
        ST, SH, SQD, SO, SO2, SP, SKQ, STI = SJ, 45, 46, 47, 48, 49, 50, 51
        self.pend = []
        self.srd(CS, 72, 2048); self.srd(WM, 80, 3145728); self.srd(XS, 0, 2048)
        self.srd(WQ, 16, 4194304); self.srd(WUK, 24, 4194304)
        self.srd(WUV, 32, 4194304); self.srd(WO, 40, 4194304)
        a('\n'.join(self.pend))
        a(f'''s_sub_u32 s{ST}, s{SJ}, 16
s_and_b32 s{SQD}, s{ST}, 3
s_lshr_b32 s{SKQ}, s{ST}, 2
s_lshl_b32 s3, s{SX}, 2
s_add_u32 s{SH}, s3, s{SKQ}
s_add_u32 s{SP}, s3, s{SQD}
s_lshl_b32 s{STI}, s{SX}, 4
s_add_u32 s{STI}, s{STI}, s{ST}''')
        VC8, VM, VX, VXO, VWQ, VUK = 5, 6, 7, 8, 9, 10
        CK64 = 11
        a(f'''v_lshlrev_b32 v{VC8}, 3, v0
v_lshrrev_b32 v12, 4, v{L_}
v_and_b32 v12, 2, v12
v_and_b32 v13, 3, v0
v_xor_b32 v12, v12, v13
v_lshlrev_b32 v{CK64}, 4, v12
v_lshrrev_b32 v13, 2, v{L_}
s_movk_i32 s3, 6144
v_mad_u32_u24 v{VM}, v13, s3, v{CK64}
v_lshlrev_b32 v{VX}, 5, v{L_}
v_and_b32 v12, 1, v0
v_lshlrev_b32 v12, 10, v12
v_lshl_add_u32 v{VXO}, v{GG}, 3, v12
s_and_b32 s3, s{SW}, 2
v_lshl_or_b32 v12, v{GG}, 2, s3
v_xor_b32 v12, v12, v{JJ}
v_lshlrev_b32 v12, 4, v12
v_lshl_add_u32 v{VWQ}, v{GG}, 13, v12
v_lshrrev_b32 v12, 2, v{JJ}
v_and_b32 v13, 3, v0
v_lshl_add_u32 v12, v12, 3, v13
v_lshlrev_b32 v13, 4, v{GG}
v_lshl_add_u32 v{VUK}, v12, 13, v13''')
        RC, RX, RXO = 16, 20, 28
        AUK = 96
        a(f'''s_lshl_b32 s3, s{SKQ}, 2
s_add_u32 s3, s3, s{SW}
s_mul_i32 s{SO}, s3, {64 * 6144}
s_lshl_b32 s3, s{SP}, 6
s_add_u32 s{SO}, s{SO}, s3
s_and_b32 s3, s3, 0x3ff
s_and_b32 s{SO2}, s{SW}, 1
s_lshl_b32 s{SO2}, s{SO2}, 5
s_add_u32 s{SO2}, s{SO2}, s3
s_lshl_b32 s3, s{SW}, 12
s_add_u32 m0, s3, {LMOD}
s_waitcnt lgkmcnt(0)
s_load_dword s{TAG}, {s(WS, 2)}, 0
s_cmp_ge_u32 s{ST}, 8
s_cbranch_scc1 Lt_nomod1a
buffer_load_dwordx2 {v(RC, 2)}, v{VC8}, {s(CS, 4)}, 0 offen''')
        self.dma(WM, [(VM, 0)], 4, 1024, 16 * 6144, SO)
        a(f'''buffer_load_dwordx4 {v(RX, 4)}, v{VX}, {s(XS, 4)}, 0 offen
buffer_load_dwordx4 {v(RX + 4, 4)}, v{VX}, {s(XS, 4)}, 0 offen offset:16
buffer_load_dwordx2 {v(RXO, 2)}, v{VXO}, {s(XS, 4)}, s{SO2} offen
Lt_nomod1a:
s_lshl_b32 s{SO}, s{SQD}, 20
s_lshl_b32 s3, s{SH}, 8
s_add_u32 s52, s{SO}, s3
s_lshl_b32 s3, s{SW}, 15
s_add_u32 s{SO}, s52, s3
s_lshl_b32 m0, s{SW}, 10''')
        self.dma(WQ, [(VWQ, 0)], 8, 4096, 131072, SO)
        a(f'''s_lshl_b32 s3, s{SW}, 18
s_add_u32 s{SO}, s52, s3
s_add_u32 s{SO2}, s{SO}, 32768''')
        for T in range(2):
            for kk in range(4):
                a(f'buffer_load_dwordx4 {v(AUK + 16 * T + 4 * kk, 4)}, v{VUK}, {s(WUK, 4)}, s{(SO, SO2)[T]} offen offset:{kk * 64} nt')
        VE1, VE2, VE3, VH2, VE5, VM2 = 32, 33, 34, 35, 36, 37
        NEG = 40
        a(f'''v_mov_b32 v{NEG}, -1
v_mov_b32 v{NEG + 1}, -1
v_mov_b32 v{NEG + 2}, -1
v_mov_b32 v{NEG + 3}, -1
v_lshlrev_b32 v14, 4, v{GG}
v_lshlrev_b32 v15, 3, v{GG}
s_lshl_b32 s3, s{STI}, 8
s_lshl_b32 s53, s{SW}, 6
s_add_u32 s3, s3, s53
s_add_u32 s3, s3, {E3}
v_bfe_u32 v12, v0, 1, 1
v_lshl_add_u32 v13, v12, 15, v14
v_add_u32 v{VE3}, s3, v13
s_lshl_b32 s3, s{SH}, 11
s_add_u32 s3, s3, s53
s_lshl_b32 s54, s{SQD}, 8
s_add_u32 s3, s3, s54
s_add_u32 s3, s3, {H2}
v_and_b32 v13, 1, v0
v_lshl_add_u32 v{VH2}, v13, 10, v14
v_add_u32 v{VH2}, s3, v{VH2}
s_and_b32 s55, s{SW}, 1
s_lshl_b32 s55, s55, 5
s_lshl_b32 s3, s{STI}, 6
s_add_u32 s3, s3, s55
s_add_u32 s3, s3, {E5}
v_bfe_u32 v{VE5}, v0, 2, 1
v_lshl_add_u32 v{VE5}, v{VE5}, 13, v15
v_add_u32 v{VE5}, s3, v{VE5}
s_lshl_b32 s56, s{SX}, 3
s_add_u32 s56, s56, s{ST}
s_sub_u32 s56, s56, 8
s_lshr_b32 s3, s56, 4
s_lshl_b32 s3, s3, 11
s_and_b32 s57, s56, 15
s_lshl_b32 s57, s57, 6
s_add_u32 s3, s3, s57
s_add_u32 s3, s3, s55
s_add_u32 s3, s3, {MOD2}
s_cmp_ge_u32 s{ST}, 8
s_cselect_b32 s3, s3, {OOB}
v_add_u32 v{VM2}, s3, v{VXO}''')
        self.execm(0x00050005)
        a(f'buffer_store_dwordx4 {v(NEG, 4)}, v{VE3}, {s(WS, 4)}, 0 offen sc1')
        self.execm(0x00110011)
        a(f'buffer_store_dwordx2 {v(NEG, 2)}, v{VE5}, {s(WS, 4)}, 0 offen sc1')
        self.execm(0x00030003)
        a(f'buffer_store_dwordx4 {v(NEG, 4)}, v{VH2}, {s(WS, 4)}, 0 offen sc1')
        a(f'buffer_store_dwordx2 {v(NEG, 2)}, v{VM2}, {s(WS, 4)}, 0 offen sc1')
        self.execm(-1)
        NLATE = 20
        VSILW, VSILR, VA64, VAQ0, VAQ1, VG1, VG2 = 44, 45, 46, 47, 48, 49, 50
        a(f'''s_lshr_b32 s3, s{SP}, 4
s_lshl_b32 s3, s3, 2
s_add_u32 s3, s3, s{SKQ}
s_lshl_b32 s3, s3, 11
s_and_b32 s57, s{SP}, 15
s_lshl_b32 s57, s57, 7
s_add_u32 s3, s3, s57
s_add_u32 s3, s3, s53
s_add_u32 s3, s3, {E1}
v_lshl_add_u32 v{VE1}, v13, 12, v14
v_add_u32 v{VE1}, s3, v{VE1}
s_and_b32 s3, s{SQD}, 2
s_add_u32 s3, s3, s{SQD}
s_lshl_b32 s3, s3, 9
s_lshl_b32 s57, s{SH}, 12
s_add_u32 s57, s57, {E2}
s_add_u32 s3, s3, s57
s_lshl_b32 s58, s{SW}, 7
s_add_u32 s3, s3, s58
v_lshl_add_u32 v{VE2}, v12, 10, v14
v_bfe_u32 v12, v0, 2, 1
v_lshl_add_u32 v{VE2}, v12, 6, v{VE2}
v_add_u32 v{VE2}, s3, v{VE2}
v_lshrrev_b32 v12, 7, v0
v_lshl_add_u32 v{VSILW}, v12, 5, v{VC8}
v_add_u32 v{VSILW}, {LSIL}, v{VSILW}
v_mul_u32_u24 v{VSILR}, 1056, v13
v_add_u32 v{VSILR}, v{VSILR}, v14
v_add_u32 v{VSILR}, {LSIL}, v{VSILR}
v_bfe_u32 v51, v0, 2, 2
v_lshl_add_u32 v52, v{GG}, 3, v51
v_lshlrev_b32 v53, 3, v13
v_bfe_u32 v54, v0, 1, 1
v_xor_b32 v55, s{SW}, v{GG}
v_and_b32 v55, 1, v55
v_lshl_or_b32 v55, v55, 1, v54
v_lshl_add_u32 v55, v55, 4, v53
v_lshl_add_u32 v{VA64}, v52, 6, v55
v_xor_b32 v55, s{SW}, v51
v_and_b32 v56, 1, v{GG}
v_lshl_or_b32 v55, v55, 1, v56
v_lshl_or_b32 v55, v55, 1, v54
v_lshl_add_u32 v55, v55, 4, v53
v_lshl_add_u32 v{VAQ0}, v52, 8, v55
v_xor_b32 v{VAQ1}, 32, v{VAQ0}
v_lshlrev_b32 v55, 5, v{GG}
v_lshl_add_u32 v{VG1}, v{JJ}, 11, v55
v_lshl_add_u32 v{VG2}, v{JJ}, 9, v55
s_lshl_b32 s58, s{SQD}, 9
s_add_u32 s58, s58, {E1}
s_waitcnt lgkmcnt(0)
s_add_u32 s{TAG}, s{TAG}, {PHI:#x}''')
        PK = 60
        for r in (0, 1, 4, 5):
            a(f'v_mov_b32 v{PK + r}, s{TAG}')
        a(f's_cmp_ge_u32 s{ST}, 8\ns_cbranch_scc1 Lt_nomod1b')
        a(f's_waitcnt vmcnt({NLATE + 7})')
        self.silu(RC, 68, VSILW)
        a(f's_waitcnt vmcnt({NLATE})')
        SUM, SQ, AM, ACC = 66, 67, 76, 80
        for i in range(4):
            self.unpack4(68, RX + 2 * i)
            for k in range(4):
                if i == 0 and k == 0:
                    a(f'v_mov_b32 v{SUM}, v68\nv_mul_f32 v{SQ}, v68, v68')
                else:
                    a(f'v_add_f32 v{SUM}, v{SUM}, v{68 + k}\nv_fmac_f32 v{SQ}, v{68 + k}, v{68 + k}')
        a('s_waitcnt lgkmcnt(0)\ns_barrier')
        a(f's_cmp_ge_u32 s{SW}, 2\ns_cbranch_scc1 Lt_nomod1b')
        a(f'''s_lshl_b32 s3, s{SKQ}, 9
v_add_u32 v84, s3, v{VSILR}
v_add_u32 v85, {LMOD}, v{VA64}''')
        self.gemv64(8, 85, 84, ACC, 128, 148, '0')
        self.red16('v_add_f32', (SUM, SQ))
        a(f'''v_mov_b32 v68, v{SUM}
v_mov_b32 v69, v{SQ}
v_permlane16_swap_b32 v68, v{SUM}
v_permlane16_swap_b32 v69, v{SQ}
v_add_f32 v{SUM}, v{SUM}, v68
v_add_f32 v{SQ}, v{SQ}, v69
v_mul_f32 v{SUM}, {f32(1 / 512)}, v{SUM}
v_mul_f32 v{SQ}, {f32(1 / 512)}, v{SQ}
v_fma_f32 v{SQ}, -v{SUM}, v{SUM}, v{SQ}
v_max_f32 v{SQ}, 0, v{SQ}
v_add_f32 v{SQ}, {f32(1e-5)}, v{SQ}
v_rsq_f32 v{SQ}, v{SQ}
v_mov_b32 v68, v{SUM}
v_cmp_eq_u32 vcc, 1, v13
v_mov_b32 v69, v{SQ}
v_permlane32_swap_b32 v{SUM}, v68
v_permlane32_swap_b32 v{SQ}, v69
v_cndmask_b32 v{SUM}, v{SUM}, v68, vcc
v_cndmask_b32 v{SQ}, v{SQ}, v69, vcc''')
        self.unpack4(AM, RXO)
        a(f's_cmp_lt_u32 s{SP}, 16\ns_cbranch_scc1 Lt_sa')
        a(f's_cmp_eq_u32 s{SKQ}, 0\ns_cselect_b32 s3, 1.0, 0')
        for r in range(4):
            a(f'v_sub_f32 v{AM + r}, v{AM + r}, v{SUM}')
        for r in range(4):
            a(f'v_mul_f32 v{AM + r}, v{AM + r}, v{SQ}')
        for r in range(4):
            a(f'v_add_f32 v{ACC + r}, s3, v{ACC + r}')
        for r in range(4):
            a(f'v_mul_f32 v{ACC + r}, v{AM + r}, v{ACC + r}')
        a('Lt_sa:')
        a(f'v_cvt_pk_bf16_f32 v{PK + 2}, v{ACC}, v{ACC + 1}\nv_cvt_pk_bf16_f32 v{PK + 3}, v{ACC + 2}, v{ACC + 3}')
        self.execm(3)
        a(f'''buffer_store_dwordx4 {v(PK, 4)}, v{VE1}, {s(WS, 4)}, 0 offen sc1
s_lshl_b64 exec, exec, 16
buffer_store_dwordx4 {v(PK + 2, 4)}, v{VE1}, {s(WS, 4)}, 0 offen sc1
s_mov_b64 exec, -1''')
        self.stamp(1)
        a('s_waitcnt vmcnt(2)\ns_branch Lt_join\nLt_nomod1b:\ns_waitcnt vmcnt(0)\nLt_join:\ns_barrier')
        self.stamp(2)
        a(f'''s_lshl_b32 s3, s{STI}, 2
s_add_u32 s3, s3, {FLAGS}
s_cmp_eq_u32 s{SW}, 3
s_cselect_b32 s3, s3, {OOB}
v_mov_b32 v12, s3
s_mov_b64 exec, 1
buffer_store_dword v{PK}, v12, {s(WS, 4)}, 0 offen sc1
s_mov_b64 exec, -1''')
        AQ, BG, D0, D1, XR = 128, 160, 68, 72, 76
        self.preread([f'ds_read_b64_tr_b16 {v(AQ + 16 * T + 4 * kk + 2 * e, 2)}, v{(VAQ0, VAQ1)[T]} offset:{kk * 8192 + e * 1024}'
                      for kk in range(4) for T in range(2) for e in range(2)])

        def gather8(vo, so):
            def loads():
                for kk in range(4):
                    for hf in range(2):
                        a(f'buffer_load_dwordx4 {v(BG + 8 * kk + 4 * hf, 4)}, v{vo}, {s(WS, 4)}, s{so} offen offset:{kk * 128 + hf * 16} sc1')
                a('s_waitcnt vmcnt(0)')
            self.execm(0x00ff00ff)
            self.poll(loads, lambda: self.chk_tag([BG + 8 * kk + o for kk in range(4) for o in (0, 7)], 12))
            self.execm(-1)

        def mm8(A):
            for kk in range(4):
                for T in range(2):
                    d = (D0, D1)[T]
                    a(f'v_mfma_f32_16x16x32_bf16 {v(d, 4)}, {v(A + 16 * T + 4 * kk, 4)}, {v(BG + 8 * kk + 2, 4)}, {v(d, 4) if kk else 0}')
        gather8(VG1, 58)
        self.stamp(3)
        a('s_waitcnt lgkmcnt(0)')
        mm8(AQ)
        self.fold2(D0, D1, XR)
        a(f'v_cvt_pk_bf16_f32 v{PK + 2}, v{XR}, v{XR + 1}\nv_cvt_pk_bf16_f32 v{PK + 3}, v{XR + 2}, v{XR + 3}')
        self.execm(0x55)
        a(f'''buffer_store_dwordx4 {v(PK, 4)}, v{VE2}, {s(WS, 4)}, 0 offen sc1
s_lshl_b64 exec, exec, 16
buffer_store_dwordx4 {v(PK + 2, 4)}, v{VE2}, {s(WS, 4)}, 0 offen sc1''')
        gather8(VG2, 57)
        self.stamp(4)
        mm8(AUK)
        self.fold2(D0, D1, XR)
        a(f'''v_cvt_pk_bf16_f32 v80, v{XR}, v{XR + 1}
v_cvt_pk_bf16_f32 v81, v{XR + 2}, v{XR + 3}
v_mov_b32_dpp v82, v80 row_shl:4 {DPPM}
v_mov_b32_dpp v83, v81 row_shl:4 {DPPM}
v_min_u32 v80, -2, v80''')
        self.execm(0x00050005)
        a(f'buffer_store_dwordx4 v[80:83], v{VE3}, {s(WS, 4)}, 0 offen sc1')
        self.execm(-1)
        self.stamp(5)
        a(f'''v_lshlrev_b32 v12, 2, v{GG}
v_xor_b32 v12, v12, v{JJ}
v_lshlrev_b32 v12, 4, v12
v_lshl_add_u32 v12, v56, 18, v12
v_lshrrev_b32 v55, 5, v{L_}
v_lshl_add_u32 v12, v55, 17, v12
s_lshr_b32 s3, s{SW}, 1
s_lshl_b32 s3, s3, 19
s_add_u32 s{SO}, s52, s3
s_lshl_b32 s3, s55, 11
s_add_u32 s{SO}, s{SO}, s3
s_lshl_b32 s59, s{SW}, 13
s_add_u32 m0, s59, {LWUV}''')
        self.dma(WUV, [(12, 0)], 8, 1024, 8192, SO)
        a(f'''v_lshrrev_b32 v55, 2, v{L_}
v_lshl_add_u32 v12, v55, 10, v{CK64}
s_lshl_b32 s{SO}, s{SX}, 19
s_lshl_b32 s3, s{SW}, 17
s_add_u32 s{SO}, s{SO}, s3
s_lshl_b32 s3, s{ST}, 6
s_add_u32 s{SO}, s{SO}, s3
s_add_u32 m0, s59, {LWO}''')
        self.dma(WO, [(12, 0)], 8, 1024, 16384, SO)
        a(f'''s_cmp_lt_u32 s{ST}, 8
s_cbranch_scc1 Lt_nomod2a
buffer_load_dwordx2 {v(RC, 2)}, v{VC8}, {s(CS, 4)}, 0 offen
s_mul_i32 s{SO}, s{SW}, {128 * 6144}
s_lshl_b32 s3, s56, 6
s_add_u32 s{SO}, s{SO}, s3
s_add_u32 s{SO}, s{SO}, 2048
s_add_u32 m0, s59, {LMOD}''')
        self.dma(WM, [(VM, 0)], 8, 1024, 16 * 6144, SO)
        a('s_waitcnt vmcnt(8)')
        self.silu(RC, 68, VSILW)
        a('Lt_nomod2a:')
        VGT, VALW, VALR, VH1, VCCW, VCCR, VAUV, VH2G = 5, 7, 9, 10, 16, 17, 18, 19
        SEL = 20
        a(f'''v_lshlrev_b32 v{VGT}, 5, v{L_}
v_lshlrev_b32 v{VALW}, 2, v0
v_add_u32 v{VALW}, {LAL}, v{VALW}
v_and_b32 v12, 1, v51
v_lshlrev_b32 v55, 5, v{GG}
v_lshl_add_u32 v12, v12, 7, v55
s_lshl_b32 s3, s{SW}, 8
s_add_u32 s3, s3, {LAL}
v_add_u32 v{VALR}, s3, v12
v_bfe_u32 v12, v0, 3, 1
v_and_b32 v55, 7, v0
v_lshlrev_b32 v55, 3, v55
v_add_u32 v55, s53, v55
v_lshl_add_u32 v{VH1}, v12, 14, v55
v_lshl_add_u32 v{VH1}, v{GG}, 12, v{VH1}
v_mul_u32_u24 v{VCCW}, 288, v12
v_add_u32 v{VCCW}, v{VCCW}, v55
v_add_u32 v{VCCW}, {LCC}, v{VCCW}
v_cmp_eq_u32 vcc, v12, v56
v_mov_b32 v55, {LDUMP}
v_mul_u32_u24 v{VCCR}, 288, v13
v_cndmask_b32 v{VCCW}, v55, v{VCCW}, vcc
v_add_u32 v{VCCR}, v{VCCR}, v14
v_add_u32 v{VCCR}, {LCC}, v{VCCR}
v_xor_b32 v12, s{SW}, v51
v_and_b32 v55, 3, v0
v_lshl_or_b32 v12, v12, 2, v55
v_lshlrev_b32 v12, 4, v12
v_lshl_add_u32 v{VAUV}, v52, 8, v12
v_add_u32 v{VAUV}, {LWUV}, v{VAUV}
v_lshl_add_u32 v{VH2G}, v{JJ}, 8, v14
v_cmp_eq_u32 vcc, 1, v13
v_mov_b32 v24, 0x0c0c0100
v_mov_b32 v25, 0x01000c0c
v_mov_b32 v26, 0x0c0c0302
v_mov_b32 v27, 0x03020c0c
v_cndmask_b32 v24, v24, v25, vcc
v_cndmask_b32 v26, v26, v27, vcc
v_cmp_eq_u32 vcc, 1, v54
v_mov_b32 v25, 0x0c0c0c0c
s_lshl_b32 s{SO}, s{SH}, 11
s_add_u32 s{SO}, s{SO}, {GATE}
v_cndmask_b32 v{SEL}, v24, v25, vcc
v_cndmask_b32 v{SEL + 1}, v25, v24, vcc
v_cndmask_b32 v{SEL + 2}, v26, v25, vcc
v_cndmask_b32 v{SEL + 3}, v25, v26, vcc
s_lshl_b32 s{SO2}, s{STI}, 15
s_add_u32 s{SO2}, s{SO2}, {H1}
s_lshl_b32 s57, s{SX}, 13
s_add_u32 s57, s57, {H2}
s_add_u32 s58, s57, 4096
s_waitcnt vmcnt(0) lgkmcnt(0)
s_barrier''')
        self.stamp(6)
        AUV, AWO = 96, 192
        a(f's_cmp_ge_u32 s{SW}, 2\ns_cbranch_scc1 Lt_nowo')
        a(f's_cmp_lt_u32 s{ST}, 8\ns_cbranch_scc1 Lt_nomod2b')
        a(f'v_add_u32 v85, {LMOD}, v{VA64}')
        self.gemv64(16, 85, VSILR, ACC, 128, 148, '0')
        a(f'''v_cvt_pk_bf16_f32 v84, v{ACC}, v{ACC + 1}
v_cvt_pk_bf16_f32 v85, v{ACC + 2}, v{ACC + 3}
v_min_u32 v84, -2, v84''')
        self.execm(0x00030003)
        a(f'buffer_store_dwordx2 v[84:85], v{VM2}, {s(WS, 4)}, 0 offen sc1')
        self.execm(-1)
        a(f'Lt_nomod2b:\nv_add_u32 v12, {LWO}, v{VA64}')
        self.preread([f'ds_read_b64_tr_b16 {v(AWO + 4 * kk + 2 * e, 2)}, v12 offset:{kk * 2048 + e * 256}'
                      for kk in range(16) for e in range(2)])
        a('s_waitcnt lgkmcnt(0)\nLt_nowo:')
        self.preread([f'ds_read_b64_tr_b16 {v(AUV + 16 * T + 4 * kk + 2 * e, 2)}, v{VAUV} offset:{kk * 8192 + e * 1024 + T * 8}'
                      for kk in range(4) for T in range(2) for e in range(2)])
        GT = 68

        def gl():
            a(f'buffer_load_dwordx4 {v(GT, 4)}, v{VGT}, {s(WS, 4)}, s{SO} offen sc1')
            a(f'buffer_load_dwordx4 {v(GT + 4, 4)}, v{VGT}, {s(WS, 4)}, s{SO} offen offset:16 sc1')
            a('s_waitcnt vmcnt(0)')
        self.poll(gl, lambda: self.chk_tag([GT + 2, GT + 6], 12))
        self.stamp(7)
        a(f'v_max_f32 v76, v{GT}, v{GT + 4}')
        self.red16('v_max_f32', (76,))
        a(f'''v_mov_b32 v77, v76
v_permlane16_swap_b32 v76, v77
v_max_f32 v76, v76, v77
v_sub_f32 v{GT}, v{GT}, v76
v_sub_f32 v{GT + 4}, v{GT + 4}, v76
v_exp_f32 v{GT}, v{GT}
v_exp_f32 v{GT + 4}, v{GT + 4}
v_mul_f32 v76, v{GT}, v{GT + 1}
v_fmac_f32 v76, v{GT + 4}, v{GT + 5}''')
        self.red16('v_add_f32', (76,))
        WA, AR, BH = 84, 128, 160
        a(f'''v_mov_b32 v77, v76
v_permlane16_swap_b32 v76, v77
v_add_f32 v76, v76, v77
v_rcp_f32 v76, v76
v_mul_f32 v{GT}, v{GT}, v76
v_mul_f32 v{GT + 4}, v{GT + 4}, v76
v_cvt_pk_bf16_f32 v76, v{GT}, v{GT + 4}
s_waitcnt lgkmcnt(0)
ds_write_b32 v{VALW}, v76
ds_read_b128 {v(WA, 4)}, v{VALR}
ds_read_b128 {v(WA + 4, 4)}, v{VALR} offset:16
s_waitcnt lgkmcnt(0)''')
        for u in range(8):
            for d in range(4):
                a(f'v_perm_b32 v{AR + 4 * u + d}, v{WA + u}, v{WA + u}, v{SEL + d}')

        def hl():
            for i in range(16):
                a(f'buffer_load_dwordx2 {v(BH + 2 * i, 2)}, v{VH1}, {s(WS, 4)}, s{SO2} offen offset:{i * 256} sc1')
            a('s_waitcnt vmcnt(0)')
        self.poll(hl, lambda: self.chk_sent([BH + 2 * i for i in range(16)], 12))
        self.stamp(8)
        for u in range(8):
            a(f'v_mfma_f32_16x16x32_bf16 {v(D0, 4)}, {v(AR + 4 * u, 4)}, {v(BH + 4 * u, 4)}, {v(D0, 4) if u else 0}')
        a(f'''v_cvt_pk_bf16_f32 v76, v{D0}, v{D0 + 1}
v_cvt_pk_bf16_f32 v77, v{D0 + 2}, v{D0 + 3}
ds_write_b64 v{VCCW}, v[76:77]
s_waitcnt lgkmcnt(0)
s_barrier''')
        BC = 128
        for kk in range(4):
            a(f'ds_read_b128 {v(BC + 4 * kk, 4)}, v{VCCR} offset:{kk * 64}')
        for kk in range(4):
            a(f's_waitcnt lgkmcnt({3 - kk})')
            for T in range(2):
                d = (D0, D1)[T]
                a(f'v_mfma_f32_16x16x32_bf16 {v(d, 4)}, {v(AUV + 16 * T + 4 * kk, 4)}, {v(BC + 4 * kk, 4)}, {v(d, 4) if kk else 0}')
        for i in range(4):
            a(f'v_cvt_pk_bf16_f32 v{80 + i}, v{D0 + 2 * i}, v{D0 + 2 * i + 1}')
        a('v_min_u32 v80, -2, v80')
        self.execm(0x00030003)
        a(f'buffer_store_dwordx4 v[80:83], v{VH2}, {s(WS, 4)}, 0 offen sc1')
        self.stamp(9)
        a(f's_cmp_lt_u32 s{SW}, 2\ns_cbranch_scc1 Lt_wo')
        self.end()
        a('Lt_wo:')
        BO = 128

        def ol():
            for kk in range(16):
                a(f'buffer_load_dwordx4 {v(BO + 4 * kk, 4)}, v{VH2G}, {s(WS, 4)}, s{57 + (kk >> 3)} offen offset:{((kk >> 2) & 1) * 2048 + (kk & 3) * 64} sc1')
            a('s_waitcnt vmcnt(0)')
        self.execm(0x00ff00ff)
        self.poll(ol, lambda: self.chk_sent([BO + 4 * kk for kk in range(16)], 12))
        self.execm(-1)
        self.stamp(10)
        for kk in range(16):
            a(f'v_mfma_f32_16x16x32_bf16 {v(D0, 4)}, {v(AWO + 4 * kk, 4)}, {v(BO + 4 * kk, 4)}, {v(D0, 4) if kk else 0}')
        for m in (X1, X2):
            for r in range(4):
                a(f'v_add_f32_dpp v{D0 + r}, v{D0 + r}, v{D0 + r} {m} {DPPM}')
        a(f'''v_cvt_pk_bf16_f32 v76, v{D0}, v{D0 + 1}
v_cvt_pk_bf16_f32 v77, v{D0 + 2}, v{D0 + 3}
v_min_u32 v76, -2, v76''')
        self.execm(0x00110011)
        a(f'buffer_store_dwordx2 v[76:77], v{VE5}, {s(WS, 4)}, 0 offen sc1')
        self.stamp(11)
        self.end()

    def role_a(self):
        a = self.a
        L_, JJ, GG = 2, 3, 4
        CKV, W1, W2, OUT = S0, S1, S2, S3
        LQB = 131072
        SAI, SO, SO2, SFI, SK = 45, 46, 47, 48, 50
        SH1 = 52
        a('Lrole_a:')
        self.pend = []
        self.srd(CKV, 8, 16777216); self.srd(W1, 56, 1835008); self.srd(W2, 64, 1835008)
        self.srd(OUT, 88, 2048); self.srd(XS, 0, 2048)
        a('\n'.join(self.pend))
        VD = 5
        a(f'''s_lshl_b32 s{SAI}, s{SX}, 4
s_add_u32 s{SAI}, s{SAI}, s{SJ}
v_xor_b32 v12, s{SW}, v{L_}
v_lshlrev_b32 v{VD}, 4, v12
v_xor_b32 v{VD + 1}, 64, v{VD}
v_xor_b32 v{VD + 2}, 0x80, v{VD}
v_xor_b32 v{VD + 3}, 0xc0, v{VD}
s_lshl_b32 s{SO}, s{SAI}, 17
s_lshl_b32 s49, s{SW}, 12
s_add_u32 s{SO}, s{SO}, s49
s_mov_b32 m0, s49
s_waitcnt lgkmcnt(0)
s_load_dword s{TAG}, {s(WS, 2)}, 0''')
        self.dma(CKV, [(VD + i, 1024 * i) for i in range(4)], 8, 16384, 16384, SO)
        NEG, VE7, VH1 = 16, 9, 10
        a(f'''v_mov_b32 v{NEG}, -1
v_mov_b32 v{NEG + 1}, -1
v_mov_b32 v{NEG + 2}, -1
v_mov_b32 v{NEG + 3}, -1
v_lshlrev_b32 v12, 4, v{JJ}
v_lshl_add_u32 v12, v{GG}, 17, v12
s_lshl_b32 s{SO}, s{SW}, 15
s_lshl_b32 s3, s{SAI}, 8
s_add_u32 s{SO}, s{SO}, s3
s_add_u32 s{SH1}, s{SO}, {H1}
s_mov_b32 s{SO}, s{SH1}
s_mov_b32 s3, 8
La_clr:
buffer_store_dwordx4 {v(NEG, 4)}, v12, {s(WS, 4)}, s{SO} offen sc1
s_add_u32 s{SO}, s{SO}, {4 * 131072}
s_sub_u32 s3, s3, 1
s_cmp_lg_u32 s3, 0
s_cbranch_scc1 La_clr
s_mul_i32 s{SFI}, s{SX}, 7
s_add_u32 s{SFI}, s{SFI}, s{SJ}
s_mul_i32 s3, s{SW}, {4 * 7168}
s_lshl_b32 s{SO}, s{SFI}, 7
s_add_u32 s3, s3, s{SO}
s_add_u32 s3, s3, {E7}
s_cmp_lt_u32 s{SJ}, 7
s_cselect_b32 s3, s3, {OOB}
v_bfe_u32 v20, v0, 2, 2
v_and_b32 v21, 1, v0
v_bfe_u32 v22, v0, 1, 1
v_mul_u32_u24 v{VE7}, 7168, v20
v_lshl_add_u32 v{VE7}, v21, 6, v{VE7}
v_lshl_add_u32 v{VE7}, v22, 5, v{VE7}
v_lshl_add_u32 v{VE7}, v{GG}, 3, v{VE7}
v_add_u32 v{VE7}, s3, v{VE7}
buffer_store_dwordx2 {v(NEG, 2)}, v{VE7}, {s(WS, 4)}, 0 offen sc1''')
        for i in range(1, 8):
            a(f's_add_u32 s{SH1 + i}, s{SH1}, {(8 * (i >> 1) + 2 * (i & 1)) * 131072}')
        AK, AQ, AV = 24, 32, 40
        VPW, VPR, VMW, VMR, VCK, VFL, VGS = 56, 57, 58, 59, 60, 61, 62
        a(f'''v_lshrrev_b32 v23, 5, v{L_}
v_and_b32 v13, 1, v{GG}
v_lshl_add_u32 v12, v23, 2, v13
v_lshlrev_b32 v14, 3, v{JJ}
v_lshl_add_u32 v{VH1}, v12, 17, v14
v_and_b32 v14, 31, v0
v_and_b32 v12, 3, v0
v_lshl_or_b32 v12, v12, 2, v20
v_xor_b32 v12, v12, v23
v_lshlrev_b32 v12, 4, v12
v_lshl_add_u32 v12, v14, 10, v12
s_lshl_b32 s3, s{SW}, 15''')
        for t in range(8):
            a(f'v_xor_b32 v15, {32 * t}, v12\nv_add_u32 v{AK + t}, s3, v15\nv_add_u32 v{AQ + t}, {LQB}, v15')
        a(f'''v_lshl_or_b32 v12, v20, 1, v13
v_xor_b32 v15, v22, v23
v_lshl_or_b32 v12, v12, 1, v15
v_lshlrev_b32 v12, 4, v12
v_lshl_add_u32 v12, v21, 3, v12
v_lshl_add_u32 v15, v23, 2, v20
v_lshl_add_u32 v12, v15, 10, v12
s_lshl_b32 s3, s{SW}, 8
v_add_u32 v12, s3, v12''')
        for T in range(4):
            for e in range(2):
                r = AV + 4 * T + 2 * e
                a(f'v_xor_b32 v{r}, {64 * T + 32 * e + 8192 * e}, v12\nv_add_u32 v{r + 1}, 0x10000, v{r}')
        a(f'''v_lshlrev_b32 v12, 4, v14
v_add_u32 v{VMR}, {LQB}, v12
v_lshl_add_u32 v{VPR}, v23, 10, v{VMR}
v_add_u32 v{VPW}, s49, v{VPR}
s_lshl_b32 s3, s{SW}, 2
v_add_u32 v{VMW}, s3, v{VPR}
s_add_u32 s51, s49, {LQB}
v_lshl_add_u32 v{VCK}, v{L_}, 4, s51
v_lshlrev_b32 v{VFL}, 3, v{L_}
s_lshl_b32 s3, s{SAI}, 4
s_add_u32 s3, s3, {GATE}
v_lshl_add_u32 v{VGS}, v14, 11, s3
s_lshr_b32 s{SO}, s{SX}, 2
s_lshl_b32 s{SO}, s{SO}, 15
s_add_u32 s{SO}, s{SO}, s49
s_add_u32 s{SO}, s{SO}, {E3}
s_add_u32 s{SO2}, s{SO}, 16384
s_mov_b32 s{SK}, {f32(128 ** -0.5 * math.log2(math.e))}
s_movk_i32 s60, {FLAGS}
s_waitcnt lgkmcnt(0)
s_add_u32 s{TAG}, s{TAG}, {PHI:#x}''')
        GV = 64
        a(f'v_mov_b32 v{GV + 2}, s{TAG}\nv_mov_b32 v{GV + 3}, s{TAG}')

        def fl():
            a(f'buffer_load_dwordx2 v[68:69], v{VFL}, {s(WS, 4)}, s60 offen sc1\ns_waitcnt vmcnt(0)')
        self.poll(fl, lambda: self.chk_tag([68, 69], 12))
        self.stamp(1)

        def ql():
            for h in range(2):
                a(f's_add_u32 m0, s51, {16384 * h}')
                for i in range(4):
                    a(f'buffer_load_dwordx4 v{VD + i}, {s(WS, 4)}, s{(SO, SO2)[h]} offen offset:{1024 * i} sc1 lds')
            a('s_waitcnt vmcnt(0)')
            for h in range(2):
                for i in range(4):
                    a(f'ds_read_b32 v{68 + 4 * h + i}, v{VCK} offset:{16384 * h + 1024 * i}')
            a('s_waitcnt lgkmcnt(0)')
        self.poll(ql, lambda: self.chk_sent(range(68, 76), 12))
        a('s_barrier')
        self.stamp(2)
        SA, KF, QF = 80, 96, 112
        q = LQ(a)

        def rdqk(t):
            r = 4 * (t % 4)
            q.issue(f'ds_read_b128 {v(KF + r, 4)}, v{AK + t % 8} offset:{256 * (t // 8)}')
            q.issue(f'ds_read_b128 {v(QF + r, 4)}, v{AQ + t % 8} offset:{256 * (t // 8)}', t)
        for t in range(3):
            rdqk(t)
        for t in range(32):
            q.wait(t)
            r = 4 * (t % 4)
            a(f'v_mfma_f32_32x32x16_bf16 {v(SA, 16)}, {v(KF + r, 4)}, {v(QF + r, 4)}, {v(SA, 16) if t else 0}')
            if t + 3 < 32:
                rdqk(t + 3)
            if t == 16:
                a('s_barrier')
        VF, NV = 128, 6
        order = [(ph, u, T) for ph in range(2) for u in range(8) for T in (2 * ph, 2 * ph + 1)]

        def rdv(m):
            ph, u, T = order[m]
            r = VF + 4 * (m % NV)
            for e in range(2):
                q.issue(f'ds_read_b64_tr_b16 {v(r + 2 * e, 2)}, v{AV + 4 * T + 2 * e + (u >> 2)} offset:{16384 * (u & 3)}',
                        ('v', m) if e else None)
        for m in range(NV - 1):
            rdv(m)
        a(f'v_max3_f32 v12, v{SA}, v{SA + 1}, v{SA + 2}\nv_max3_f32 v13, v{SA + 3}, v{SA + 4}, v{SA + 5}')
        a(f'v_max3_f32 v12, v12, v{SA + 6}, v{SA + 7}\nv_max3_f32 v13, v13, v{SA + 8}, v{SA + 9}')
        a(f'v_max3_f32 v12, v12, v{SA + 10}, v{SA + 11}\nv_max3_f32 v13, v13, v{SA + 12}, v{SA + 13}')
        a(f'v_max3_f32 v12, v12, v{SA + 14}, v{SA + 15}\nv_max_f32 v12, v12, v13')
        q.issue(f'ds_write_b32 v{VMW}, v12 offset:{16 * 1024}')
        q.drain()
        a('s_barrier')
        self.stamp(3)
        a(f'''ds_read_b128 v[68:71], v{VMR} offset:{16 * 1024}
ds_read_b128 v[72:75], v{VMR} offset:{17 * 1024}
s_waitcnt lgkmcnt(1)
v_max3_f32 v12, v68, v69, v70
s_waitcnt lgkmcnt(0)
v_max3_f32 v12, v12, v71, v72
v_max3_f32 v12, v12, v73, v74
v_max_f32 v12, v12, v75
v_mul_f32 v{GV}, s{SK}, v12''')
        PW = 96
        for i in range(0, 16, 2):
            a(f'v_pk_fma_f32 {v(SA + i, 2)}, {v(SA + i, 2)}, {s(SK, 2)}, {v(GV, 2)} op_sel_hi:[1,0,0] neg_lo:[0,0,1] neg_hi:[0,0,1]')
        for hlf in range(2):
            for i in range(8):
                a(f'v_exp_f32 v{SA + 8 * hlf + i}, v{SA + 8 * hlf + i}')
            for i in range(4):
                a(f'v_cvt_pk_bf16_f32 v{PW + 4 * hlf + i}, v{SA + 8 * hlf + 2 * i}, v{SA + 8 * hlf + 2 * i + 1}')
            a(f'ds_write_b128 v{VPW}, {v(PW + 4 * hlf, 4)} offset:{2048 * hlf}')
        for n in (8, 4, 2):
            for i in range(0, n, 2):
                a(f'v_pk_add_f32 {v(SA + i, 2)}, {v(SA + i, 2)}, {v(SA + n + i, 2)}')
        a(f'''v_add_f32 v12, v{SA}, v{SA + 1}
ds_write_b32 v{VMW}, v12 offset:{18 * 1024}
s_waitcnt lgkmcnt(0)
s_barrier''')
        self.stamp(4)
        PF, DA, PKR = 96, 160, 224
        for u in range(8):
            q.issue(f'ds_read_b128 {v(PF + 4 * u, 4)}, v{VPR} offset:{2048 * u}', ('p', u))
        q.issue(f'ds_read_b128 v[68:71], v{VMR} offset:{18 * 1024}')
        q.issue(f'ds_read_b128 v[72:75], v{VMR} offset:{19 * 1024}', 'l')

        def epi(ph):
            o = []
            d0, d1 = DA + 32 * ph, DA + 32 * ph + 16
            pk = PKR + 16 * ph
            for r in range(0, 16, 4):
                for i in range(4):
                    o.append(f'v_cvt_pk_bf16_f32 v{pk + r + i}, v{d0 + r + i}, v{d1 + r + i}')
                for i in (0, 2):
                    o.append(f'v_permlane16_swap_b32 v{pk + r + i}, v{pk + r + i + 1}')
                for i in (0, 2):
                    o.append(f'v_min_u32 v{pk + r + i}, -2, v{pk + r + i}')
                for i in (0, 2):
                    o.append(f'buffer_store_dwordx2 {v(pk + r + i, 2)}, v{VH1}, {s(WS, 4)}, s{SH1 + (r + i) // 2} offen offset:{128 * ph} sc1')
            return o
        e0 = epi(0)
        for m in range(32):
            ph, u, T = order[m]
            q.wait(('p', u)); q.wait(('v', m))
            d = DA + 16 * T
            a(f'v_mfma_f32_32x32x16_bf16 {v(d, 16)}, {v(PF + 4 * u, 4)}, {v(VF + 4 * (m % NV), 4)}, {v(d, 16) if u else 0}')
            if m == 2:
                q.wait('l')
            if m + NV - 1 < 32:
                rdv(m + NV - 1)
            if m == 2:
                a('v_pk_add_f32 v[68:69], v[68:69], v[70:71]\nv_pk_add_f32 v[72:73], v[72:73], v[74:75]')
            if m == 3:
                a(f'v_pk_add_f32 v[68:69], v[68:69], v[72:73]\ns_lshl_b32 s3, s{SW}, 3\nv_add_f32 v{GV + 1}, v68, v69')
            if m == 4:
                a(f'''s_lshl_b64 exec, 0xff, s3
buffer_store_dwordx4 {v(GV, 4)}, v{VGS}, {s(WS, 4)}, 0 offen sc1
s_mov_b64 exec, -1''')
            if m >= 18:
                for _ in range(4):
                    if e0:
                        a(e0.pop(0))
        assert not e0
        self.stamp(5)
        a('\n'.join(epi(1)))
        self.stamp(6)
        a(f's_cmp_lt_u32 s{SJ}, 7\ns_cbranch_scc1 Lrole_f')
        a(f's_sub_u32 s3, s{SJ}, 7\ns_lshl_b32 s61, s{SW}, 1\ns_or_b32 s61, s61, s3\ns_cmp_lt_u32 s61, 2\ns_cbranch_scc1 Lrole_z')
        self.end()

        LW1, LW2, LH2, LST, LF = 0, 32768, 65536, 69632, 70656
        a(f'''Lrole_f:
v_lshrrev_b32 v12, 4, v{L_}
v_and_b32 v12, 2, v12
v_and_b32 v14, 3, v0
v_xor_b32 v12, v12, v14
v_lshlrev_b32 v12, 4, v12
v_lshrrev_b32 v15, 2, v{L_}
s_movk_i32 s3, 3584
v_mad_u32_u24 v24, v15, s3, v12
v_lshlrev_b32 v12, 2, v{GG}
v_xor_b32 v12, v12, v{JJ}
v_lshlrev_b32 v12, 4, v12
v_lshl_add_u32 v25, v{GG}, 10, v12
s_mul_i32 s{SO}, s{SW}, {128 * 3584}
s_lshl_b32 s3, s{SFI}, 6
s_add_u32 s{SO}, s{SO}, s3
s_lshl_b32 s49, s{SW}, 13
s_mov_b32 m0, s49
s_barrier''')
        self.dma(W1, [(24, 0)], 8, 1024, 16 * 3584, SO)
        a(f'''s_lshl_b32 s{SO}, s{SFI}, 15
s_lshl_b32 s51, s{SW}, 8
s_add_u32 s{SO}, s{SO}, s51
s_add_u32 m0, s49, {LW2}''')
        self.dma(W2, [(25, 0)], 8, 1024, 4096, SO)
        VMO, VE5G, VA64, VA2, VSTW, VSTR, VHW, VHR, VFW, VFR = 24, 25, 26, 27, 28, 29, 30, 31, 32, 33
        CA = 36
        a(f'''v_and_b32 v13, 1, v{GG}
v_lshlrev_b32 v12, 4, v{JJ}
v_add_u32 v12, s51, v12
v_lshl_add_u32 v{VE5G}, v{GG}, 12, v12
v_lshl_add_u32 v12, v13, 3, v12
v_lshl_add_u32 v{VMO}, v23, 10, v12
v_mul_u32_u24 v{VHW}, 1056, v23
v_add_u32 v{VHW}, v{VHW}, v12
v_add_u32 v{VHW}, {LH2}, v{VHW}
v_lshlrev_b32 v14, 4, v{GG}
v_mul_u32_u24 v{VHR}, 1056, v21
v_add_u32 v{VHR}, v{VHR}, v14
v_add_u32 v{VHR}, {LH2}, v{VHR}
v_mul_u32_u24 v15, 96, v21
v_add_u32 v15, {LF}, v15
v_add_u32 v{VFR}, v15, v14
v_lshl_add_u32 v{VFW}, v{GG}, 3, v15
s_lshl_b32 s3, s{SW}, 5
v_add_u32 v{VFW}, s3, v{VFW}
s_lshl_b32 s3, s{SW}, 2
s_add_u32 s3, s3, {LST}
v_add_u32 v{VSTW}, s3, v14
v_lshlrev_b32 v{VSTR}, 5, v23
v_add_u32 v{VSTR}, {LST}, v{VSTR}
v_lshl_add_u32 v15, v{GG}, 3, v20
v_xor_b32 v12, s{SW}, v{GG}
v_and_b32 v12, 1, v12
v_lshl_or_b32 v12, v12, 1, v22
v_lshlrev_b32 v12, 4, v12
v_lshl_add_u32 v12, v21, 3, v12
v_lshl_add_u32 v{VA64}, v15, 6, v12
v_lshl_or_b32 v12, v20, 2, v22
v_lshlrev_b32 v12, 4, v12
v_lshl_add_u32 v12, v21, 3, v12
v_lshl_add_u32 v{VA2}, v15, 8, v12
s_add_u32 s3, s49, {LW2}
v_add_u32 v{VA2}, s3, v{VA2}
v_lshlrev_b32 v12, 4, v21
s_movk_i32 s3, 0x3f80
v_lshlrev_b32 v12, v12, s3
v_lshrrev_b32 v14, 1, v{JJ}
v_lshlrev_b32 v15, 2, v23
v_sub_u32 v14, v14, v15''')
        for d in range(4):
            a(f'v_cmp_eq_u32 vcc, {d}, v14\nv_cndmask_b32 v{CA + d}, 0, v12, vcc')
        BF = 192
        for i in range(0, 32, 2):
            a(f'v_mov_b64 {v(BF + i, 2)}, 0')
        a(f's_mov_b32 s{SO}, {MOD2}\ns_mov_b32 s{SO2}, {MOD2 + 4096}\ns_mov_b32 s60, {E5}')
        a(f'buffer_load_dwordx2 v[46:47], v{VMO}, {s(XS, 4)}, 0 offen')

        def ml():
            a(f'''buffer_load_dwordx2 v[40:41], v{VMO}, {s(WS, 4)}, s{SO} offen sc1
buffer_load_dwordx2 v[42:43], v{VMO}, {s(WS, 4)}, s{SO} offen offset:2048 sc1
buffer_load_dwordx2 v[44:45], v{VMO}, {s(WS, 4)}, s{SO2} offen sc1
s_waitcnt vmcnt(0)''')
        self.poll(ml, lambda: self.chk_sent([40, 42, 44], 12))
        a('s_barrier')
        self.stamp(7)
        GA, SB, CB, XX = 48, 52, 56, 60
        A1, A2 = 96, 160
        for T in range(8):
            a(f'v_xor_b32 v{64 + T}, {32 * T}, v{VA2}')
        self.preread([f'ds_read_b64_tr_b16 {v(A1 + 4 * kk + 2 * e, 2)}, v{VA64} offset:{kk * 2048 + e * 256}'
                      for kk in range(16) for e in range(2)] +
                     [f'ds_read_b64_tr_b16 {v(A2 + 4 * T + 2 * e, 2)}, v{64 + T} offset:{e * 1024}'
                      for T in range(8) for e in range(2)])
        self.unpack4(GA, 40); self.unpack4(SB, 42); self.unpack4(CB, 44); self.unpack4(XX, 46)
        for r in range(4):
            a(f'v_add_f32 v{CB + r}, 1.0, v{CB + r}')
        a('s_waitcnt lgkmcnt(0)')
        BE, D0 = 64, 80

        def el():
            for i in range(4):
                a(f'buffer_load_dwordx4 {v(BE + 4 * i, 4)}, v{VE5G}, {s(WS, 4)}, s60 offen offset:{1024 * i} sc1')
            a('s_waitcnt vmcnt(0)')
        self.poll(el, lambda: self.chk_sent([BE + 2 * i for i in range(8)], 12))
        self.stamp(8)
        for i in range(4):
            a(f'v_mfma_f32_16x16x32_bf16 {v(D0, 4)}, {v(CA, 4)}, {v(BE + 4 * i, 4)}, {v(D0, 4) if i else 0}')
        a(f'''v_pk_fma_f32 {v(XX, 2)}, {v(GA, 2)}, {v(D0, 2)}, {v(XX, 2)}
v_pk_fma_f32 {v(XX + 2, 2)}, {v(GA + 2, 2)}, {v(D0 + 2, 2)}, {v(XX + 2, 2)}
v_pk_mul_f32 v[84:85], {v(XX, 2)}, {v(XX, 2)}
v_pk_add_f32 v[86:87], {v(XX, 2)}, {v(XX + 2, 2)}
v_pk_fma_f32 v[84:85], {v(XX + 2, 2)}, {v(XX + 2, 2)}, v[84:85]
v_add_f32 v86, v86, v87
v_add_f32 v84, v84, v85
v_permlane16_swap_b32 v86, v84
v_add_f32 v86, v86, v84''')
        self.red16('v_add_f32', (86,))
        a(f'''ds_write_b32 v{VSTW}, v86
s_waitcnt lgkmcnt(0)
s_barrier
ds_read_b128 v[84:87], v{VSTR}
ds_read_b128 v[88:91], v{VSTR} offset:16
s_waitcnt lgkmcnt(1)
v_pk_add_f32 v[84:85], v[84:85], v[86:87]
s_waitcnt lgkmcnt(0)
v_pk_add_f32 v[88:89], v[88:89], v[90:91]
v_add_f32 v84, v84, v85
v_add_f32 v88, v88, v89
v_mul_f32 v84, {f32(1 / 512)}, v84
v_mul_f32 v88, {f32(1 / 512)}, v88
v_fma_f32 v88, -v84, v84, v88
v_max_f32 v88, 0, v88
v_add_f32 v88, {f32(1e-5)}, v88
v_rsq_f32 v88, v88
v_pk_add_f32 {v(XX, 2)}, {v(XX, 2)}, v[84:85] op_sel_hi:[1,0] neg_lo:[0,1] neg_hi:[0,1]
v_pk_add_f32 {v(XX + 2, 2)}, {v(XX + 2, 2)}, v[84:85] op_sel_hi:[1,0] neg_lo:[0,1] neg_hi:[0,1]
v_pk_mul_f32 {v(XX, 2)}, {v(XX, 2)}, {v(CB, 2)}
v_pk_mul_f32 {v(XX + 2, 2)}, {v(XX + 2, 2)}, {v(CB + 2, 2)}
v_pk_fma_f32 {v(XX, 2)}, {v(XX, 2)}, v[88:89], {v(SB, 2)} op_sel_hi:[1,0,1]
v_pk_fma_f32 {v(XX + 2, 2)}, {v(XX + 2, 2)}, v[88:89], {v(SB + 2, 2)} op_sel_hi:[1,0,1]
v_cvt_pk_bf16_f32 v84, v{XX}, v{XX + 1}
v_cvt_pk_bf16_f32 v85, v{XX + 2}, v{XX + 3}
ds_write_b64 v{VHW}, v[84:85]
s_waitcnt lgkmcnt(0)
s_barrier''')
        self.stamp(9)
        a(f's_cmp_ge_u32 s{SW}, 2\ns_cbranch_scc1 Lf_now1')
        BH = 224
        q = LQ(a)
        for kk in range(8):
            q.issue(f'ds_read_b128 {v(BH + 4 * kk, 4)}, v{VHR} offset:{kk * 64}', kk)
        for kk in range(7):
            q.issue(f'ds_read_b128 {v(40 + 4 * kk, 4)}, v{VHR} offset:{(8 + kk) * 64}', 8 + kk)
        for kk in range(16):
            q.wait(kk)
            r = BH + 4 * kk if kk < 8 else 40 + 4 * (kk - 8)
            a(f'v_mfma_f32_16x16x32_bf16 {v(D0, 4)}, {v(A1 + 4 * kk, 4)}, {v(r, 4)}, {v(D0, 4) if kk else 0}')
            if kk == 0:
                q.issue(f'ds_read_b128 {v(68, 4)}, v{VHR} offset:{15 * 64}', 15)
        for r in range(4):
            a(f'v_max_f32 v{D0 + r}, 0, v{D0 + r}')
        a(f'''v_cvt_pk_bf16_f32 v84, v{D0}, v{D0 + 1}
v_cvt_pk_bf16_f32 v85, v{D0 + 2}, v{D0 + 3}
ds_write_b64 v{VFW}, v[84:85]
s_waitcnt lgkmcnt(0)
Lf_now1:''')
        self.execm(0x00030003)
        a('s_barrier')
        for T in range(8):
            a(f'ds_read_b128 {v(BF + 4 * T, 4)}, v{VFR}')
            a('s_lshl_b64 exec, exec, 2' if T < 7 else 's_mov_b64 exec, -1')
        for T in range(8):
            a(f's_waitcnt lgkmcnt({7 - T})')
            a(f'v_mfma_f32_16x16x32_bf16 {v(88, 4)}, {v(A2 + 4 * T, 4)}, {v(BF + 4 * T, 4)}, {v(88, 4) if T else 0}')
        a(f'''v_cvt_pk_bf16_f32 v84, v88, v89
v_cvt_pk_bf16_f32 v85, v90, v91
v_min_u32 v84, -2, v84
buffer_store_dwordx2 v[84:85], v{VE7}, {s(WS, 4)}, 0 offen sc1''')
        self.stamp(10)
        self.end()

        VO, VZ5, VZ7 = 24, 25, 26
        a(f'''Lrole_z:
s_lshl_b32 s61, s{SX}, 1
s_add_u32 s61, s61, s3
v_bfe_u32 v12, v0, 3, 1
v_and_b32 v14, 7, v0
v_lshlrev_b32 v14, 3, v14
s_lshl_b32 s3, s61, 6
v_add_u32 v14, s3, v14
v_lshl_add_u32 v{VO}, v12, 10, v14
v_lshl_add_u32 v{VZ5}, v12, 13, v14
v_lshl_add_u32 v{VZ5}, v{GG}, 11, v{VZ5}
v_mul_u32_u24 v{VZ7}, {14 * 128}, v{GG}
v_lshl_add_u32 v{VZ7}, v{JJ}, 3, v{VZ7}
v_lshlrev_b32 v12, 4, v21
s_movk_i32 s3, 0x3f80
v_lshlrev_b32 v12, v12, s3
v_cmp_eq_u32 vcc, 0, v22
s_mov_b32 s{SO}, {MOD2}
s_mov_b32 s{SO2}, {MOD2 + 6144}
v_cndmask_b32 v{CA}, 0, v12, vcc
v_cndmask_b32 v{CA + 2}, 0, v12, vcc
v_sub_u32 v{CA + 1}, v12, v{CA}
v_sub_u32 v{CA + 3}, v12, v{CA}
s_mov_b32 s60, {E5}
s_mul_i32 s62, s61, 7168
s_add_u32 s62, s62, {E7}
buffer_load_dwordx2 v[46:47], v{VO}, {s(XS, 4)}, 0 offen''')

        def zm():
            a(f'''buffer_load_dwordx2 v[40:41], v{VO}, {s(WS, 4)}, s{SO} offen sc1
buffer_load_dwordx2 v[42:43], v{VO}, {s(WS, 4)}, s{SO2} offen sc1
s_waitcnt vmcnt(0)''')
        self.poll(zm, lambda: self.chk_sent([40, 42], 12))
        self.unpack4(GA, 40); self.unpack4(SB, 42); self.unpack4(XX, 46)

        def z5():
            a(f'''buffer_load_dwordx2 v[64:65], v{VZ5}, {s(WS, 4)}, s60 offen sc1
buffer_load_dwordx2 v[66:67], v{VZ5}, {s(WS, 4)}, s60 offen offset:1024 sc1
s_waitcnt vmcnt(0)''')
        self.poll(z5, lambda: self.chk_sent([64, 66], 12))
        self.stamp(8)
        a(f'''v_mfma_f32_16x16x32_bf16 {v(D0, 4)}, {v(CA, 4)}, v[64:67], 0
s_cmp_eq_u32 s61, 0
s_cselect_b32 s3, 0, {OOB}
v_mov_b32 v12, s3
v_mov_b32 v13, s{TAG}
s_mov_b64 exec, 1
buffer_store_dword v13, v12, {s(WS, 4)}, 0 offen sc1
s_mov_b64 exec, -1
v_pk_fma_f32 {v(XX, 2)}, {v(GA, 2)}, {v(D0, 2)}, {v(XX, 2)}
v_pk_fma_f32 {v(XX + 2, 2)}, {v(GA + 2, 2)}, {v(D0 + 2, 2)}, {v(XX + 2, 2)}''')
        BZ = 96

        def z7():
            for i in range(14):
                a(f'buffer_load_dwordx2 {v(BZ + 2 * i, 2)}, v{VZ7}, {s(WS, 4)}, s62 offen offset:{128 * i} sc1')
            a('s_waitcnt vmcnt(0)')
        self.poll(z7, lambda: self.chk_sent([BZ + 2 * i for i in range(14)], 12))
        self.stamp(9)
        for u in range(7):
            a(f'v_mfma_f32_16x16x32_bf16 {v(D0, 4)}, {v(CA, 4)}, {v(BZ + 4 * u, 4)}, {v(D0, 4) if u else 0}')
        a(f'''v_pk_fma_f32 {v(XX, 2)}, {v(SB, 2)}, {v(D0, 2)}, {v(XX, 2)}
v_pk_fma_f32 {v(XX + 2, 2)}, {v(SB + 2, 2)}, {v(D0 + 2, 2)}, {v(XX + 2, 2)}
v_cvt_pk_bf16_f32 v84, v{XX}, v{XX + 1}
v_cvt_pk_bf16_f32 v85, v{XX + 2}, v{XX + 3}
s_mov_b64 exec, 0xffff
buffer_store_dwordx2 v[84:85], v{VO}, {s(OUT, 4)}, 0 offen''')
        self.stamp(10)
        self.end()

    def stamps_out(self):
        a = self.a
        a(f'''Lstamps:
s_waitcnt vmcnt(0)
s_memrealtime {s(64 + 2 * 12, 2)}
s_mov_b64 exec, 1
s_lshl_b32 s3, s2, 2
s_add_u32 s3, s3, s{SW}
s_lshl_b32 s3, s3, 6
s_add_u32 s3, s3, {STAMP}
v_mov_b32 v1, s3
s_waitcnt lgkmcnt(0)''')
        for i in range(13):
            a(f'v_mov_b32 v2, s{64 + 2 * i}\nbuffer_store_dword v2, v1, {s(WS, 4)}, 0 offen offset:{4 * i}')
        a('s_endpgm')

    def body(self):
        if self.stamps:
            for i in range(13):
                self.a(f's_mov_b32 s{64 + 2 * i}, 0')
        self.entry()
        self.role_t()
        self.role_a()
        if self.stamps:
            self.stamps_out()
        return self.a.text()


def make(**kw):
    ref = open(f'cdna_kernels/{NAME}.s.ref').read().split('\n')
    i0 = next(i for i, l in enumerate(ref) if l.startswith(KN + ':'))
    i1 = next(i for i, l in enumerate(ref) if l.startswith('s_endpgm'))
    head = [('; @launch grid=(256,1,1) block=(256,1,1) lds=163840' if l.startswith('; @launch') else l)
            for l in ref[:i0 + 1]]
    return '\n'.join(head) + '\n' + G(**kw).body() + '\n' + '\n'.join(ref[i1 + 1:])


if __name__ == '__main__':
    open('k.s', 'w').write(make())
    open('k_st.s', 'w').write(make(stamps=True))
```

```python
import sys, struct, math
sys.path.insert(0, 'work')
from asmlib import Asm, v, s

NAME = 'adaLN_cond__compressed_kv_cla__dense_activation_relu__decode'
KN = NAME + '_kernel'

FLAGS, E1, MOD2, E5, E3, E2 = 0x1000, 0x2000, 0xA000, 0xC000, 0x10000, 0x20000
GATE, H2, E7, H1, STAMP = 0x40000, 0x50000, 0x60000, 0x100000, 0x600000
WS_BYTES = 0x500000
PHI = 0x9E3779B9
SPIN = 40000
OOB = 0x7FF00000

WS, XS, CS, WM, S0, S1, S2, S3 = 4, 8, 12, 16, 20, 24, 28, 32
TAG, SW, SX, SJ, SPN = 40, 41, 42, 43, 44
DPPM = 'row_mask:0xf bank_mask:0xf'
X1, X2 = 'quad_perm:[1,0,3,2]', 'quad_perm:[2,3,0,1]'


def f32(x):
    return '0x%08x' % struct.unpack('<I', struct.pack('<f', x))[0]


class LQ:
    def __init__(self, a):
        self.a = a; self.q = []

    def issue(self, text, tag=None):
        self.a(text); self.q.append(tag)
        assert len(self.q) <= 15, 'too many LDS ops in flight'

    def wait(self, tag):
        if tag not in self.q:
            return
        i = len(self.q) - 1 - self.q[::-1].index(tag)
        self.a(f's_waitcnt lgkmcnt({len(self.q) - 1 - i})')
        self.q = self.q[i + 1:]

    def drain(self):
        self.a('s_waitcnt lgkmcnt(0)'); self.q = []


class G:
    def __init__(self, stamps=False, probe=None, **opt):
        self.a = Asm()
        self.o = opt
        self.stamps = stamps or probe is not None
        self.probe = probe

    def srd(self, r, off, size):
        self.a(f's_load_dwordx2 {s(r, 2)}, s[0:1], {off}')
        self.pend.append(f's_mov_b32 s{r + 2}, {size}\ns_mov_b32 s{r + 3}, 0x20000')

    def stamp(self, i):
        if self.stamps:
            self.a(f's_memrealtime {s(64 + 2 * i, 2)}')

    def end(self):
        self.a('s_branch Lstamps' if self.stamps else 's_endpgm')

    def execm(self, lo, hi=None):
        hi = lo if hi is None else hi
        if lo == -1 and hi == -1:
            self.a('s_mov_b64 exec, -1')
        else:
            self.a(f's_mov_b32 exec_lo, {lo:#x}\ns_mov_b32 exec_hi, {hi:#x}')

    def dma(self, srd, vo, n, m0step, sostep, so, flag='nt'):
        a = self.a
        L = a.label('dma')
        a(f's_mov_b32 s3, {n}\n{L}:')
        for r, imm in vo:
            a(f'buffer_load_dwordx4 v{r}, {s(srd, 4)}, s{so} offen offset:{imm} {flag} lds')
        a(f's_add_u32 m0, m0, {m0step}\ns_add_u32 s{so}, s{so}, {sostep}')
        a(f's_sub_u32 s3, s3, 1\ns_cmp_lg_u32 s3, 0\ns_cbranch_scc1 {L}')

    def poll(self, loads, check, name=None):
        a = self.a
        L, D = a.label('poll'), a.label('done')
        a(f's_mov_b32 s{SPN}, {SPIN}\n{L}:')
        loads()
        check()
        sl = self.o.get('sl_' + str(name), self.o.get('sl', 0))
        a(f's_cbranch_vccz {D}')
        if sl:
            a(f's_sleep {sl}')
        a(f's_sub_u32 s{SPN}, s{SPN}, 1\ns_cbranch_scc0 {L}\n{D}:')

    def chk_sent(self, rs, t):
        a = self.a
        rs = list(rs)
        if len(rs) == 1:
            a(f'v_cmp_eq_u32 vcc, -1, v{rs[0]}')
            return
        if len(rs) % 2 == 0:
            a(f'v_max_u32 v{t}, v{rs[0]}, v{rs[1]}'); rs = rs[2:]
        else:
            a(f'v_max3_u32 v{t}, v{rs[0]}, v{rs[1]}, v{rs[2]}'); rs = rs[3:]
        while rs:
            a(f'v_max3_u32 v{t}, v{t}, v{rs[0]}, v{rs[1]}'); rs = rs[2:]
        a(f'v_cmp_eq_u32 vcc, -1, v{t}')

    def chk_tag(self, rs, t):
        a = self.a
        a(f'v_xor_b32 v{t}, s{TAG}, v{rs[0]}')
        for r in rs[1:]:
            a(f'v_bitop3_b32 v{t}, v{r}, s{TAG}, v{t} bitop3:0xbe')
        a(f'v_cmp_ne_u32 vcc, 0, v{t}')

    def red16(self, op, rs):
        for m in (X1, X2, 'row_half_mirror', 'row_mirror'):
            for r in rs:
                self.a(f'{op}_dpp v{r}, v{r}, v{r} {m} {DPPM}')

    def unpack4(self, d, src):
        a = self.a
        a(f'v_lshlrev_b32 v{d}, 16, v{src}\nv_and_b32 v{d + 1}, 0xffff0000, v{src}')
        a(f'v_lshlrev_b32 v{d + 2}, 16, v{src + 1}\nv_and_b32 v{d + 3}, 0xffff0000, v{src + 1}')

    def silu(self, src, t, addr):
        a = self.a
        self.unpack4(t, src)
        for i in range(4):
            a(f'v_mul_f32 v{t + 4 + i}, {f32(-math.log2(math.e))}, v{t + i}')
        for i in range(4):
            a(f'v_exp_f32 v{t + 4 + i}, v{t + 4 + i}')
        for i in range(4):
            a(f'v_add_f32 v{t + 4 + i}, 1.0, v{t + 4 + i}')
        for i in range(4):
            a(f'v_rcp_f32 v{t + 4 + i}, v{t + 4 + i}')
        for i in range(4):
            a(f'v_mul_f32 v{t + i}, v{t + i}, v{t + 4 + i}')
        a(f'v_cvt_pk_bf16_f32 v{t + 4}, v{t}, v{t + 1}\nv_cvt_pk_bf16_f32 v{t + 5}, v{t + 2}, v{t + 3}')
        a(f'ds_write_b64 v{addr}, {v(t + 4, 2)}')

    def gemv64(self, nk, aaddr, baddr, acc, fa, fb, c0):
        q = LQ(self.a)
        depth = min(nk, 4)

        def rd(k):
            r = k % 5
            q.issue(f'ds_read_b64_tr_b16 {v(fa + 4 * r, 2)}, v{aaddr} offset:{k * 2048}')
            q.issue(f'ds_read_b64_tr_b16 {v(fa + 4 * r + 2, 2)}, v{aaddr} offset:{k * 2048 + 256}')
            q.issue(f'ds_read_b128 {v(fb + 4 * r, 4)}, v{baddr} offset:{k * 64}', k)
        for k in range(depth):
            rd(k)
        for k in range(nk):
            q.wait(k)
            r = k % 5
            c = c0 if k == 0 else v(acc, 4)
            self.a(f'v_mfma_f32_16x16x32_bf16 {v(acc, 4)}, {v(fa + 4 * r, 4)}, {v(fb + 4 * r, 4)}, {c}')
            if k + depth < nk:
                rd(k + depth)

    def preread(self, items):
        q = LQ(self.a)
        for i, t in enumerate(items):
            if len(q.q) == 15:
                q.wait(q.q[7])
            q.issue(t, i)

    def fold2(self, d0, d1, x):
        a = self.a
        for r in range(4):
            a(f'v_add_f32_dpp v{x + r}, v{d0 + r}, v{d0 + r} row_shl:4 row_mask:0xf bank_mask:0x1')
        for r in range(4):
            a(f'v_add_f32_dpp v{x + r}, v{d1 + r}, v{d1 + r} row_shr:4 row_mask:0xf bank_mask:0x2')
        for r in range(4):
            a(f'v_add_f32_dpp v{x + r}, v{x + r}, v{x + r} {X1} {DPPM}')

    def entry(self):
        a = self.a
        a('s_cmp_lt_u32 s2, 0x100\ns_cbranch_scc1 Lrun\ns_endpgm\nLrun:')
        self.stamp(0)
        self.pend = []
        self.srd(WS, 104, 0x700000 if self.stamps else WS_BYTES)
        a(f's_lshr_b32 s{SJ}, s2, 3\ns_and_b32 s{SX}, s2, 7')
        a(f'v_lshrrev_b32 v1, 6, v0\nv_and_b32 v2, 63, v0')
        a(f'v_readfirstlane_b32 s{SW}, v1')
        a('\n'.join(self.pend))
        a(f'v_and_b32 v3, 15, v0\nv_lshrrev_b32 v4, 4, v2')
        a(f's_cmp_lt_u32 s{SJ}, 16\ns_cbranch_scc1 Lrole_a')

    def role_t(self):
        a = self.a
        L_, JJ, GG = 2, 3, 4
        WQ, WUK, WUV, WO = S0, S1, S2, S3
        LWQ, LMOD, LWUV, LWO, LSIL, LCC, LAL, LDUMP = 0, 32768, 65536, 98304, 131072, 133376, 134144, 135168
        ST, SH, SQD, SO, SO2, SP, SKQ, STI = SJ, 45, 46, 47, 48, 49, 50, 51
        self.pend = []
        self.srd(CS, 72, 2048); self.srd(WM, 80, 3145728); self.srd(XS, 0, 2048)
        self.srd(WQ, 16, 4194304); self.srd(WUK, 24, 4194304)
        self.srd(WUV, 32, 4194304); self.srd(WO, 40, 4194304)
        a('\n'.join(self.pend))
        a(f'''s_sub_u32 s{ST}, s{SJ}, 16
s_and_b32 s{SQD}, s{ST}, 3
s_lshr_b32 s{SKQ}, s{ST}, 2
s_lshl_b32 s3, s{SX}, 2
s_add_u32 s{SH}, s3, s{SKQ}
s_add_u32 s{SP}, s3, s{SQD}
s_lshl_b32 s{STI}, s{SX}, 4
s_add_u32 s{STI}, s{STI}, s{ST}''')
        VC8, VM, VX, VXO, VWQ, VUK = 5, 6, 7, 8, 9, 10
        CK64 = 11
        a(f'''v_lshlrev_b32 v{VC8}, 3, v0
v_lshrrev_b32 v12, 4, v{L_}
v_and_b32 v12, 2, v12
v_and_b32 v13, 3, v0
v_xor_b32 v12, v12, v13
v_lshlrev_b32 v{CK64}, 4, v12
v_lshrrev_b32 v13, 2, v{L_}
s_movk_i32 s3, 6144
v_mad_u32_u24 v{VM}, v13, s3, v{CK64}
v_lshlrev_b32 v{VX}, 5, v{L_}
v_and_b32 v12, 1, v0
v_lshlrev_b32 v12, 10, v12
v_lshl_add_u32 v{VXO}, v{GG}, 3, v12
s_and_b32 s3, s{SW}, 2
v_lshl_or_b32 v12, v{GG}, 2, s3
v_xor_b32 v12, v12, v{JJ}
v_lshlrev_b32 v12, 4, v12
v_lshl_add_u32 v{VWQ}, v{GG}, 13, v12
v_lshrrev_b32 v12, 2, v{JJ}
v_and_b32 v13, 3, v0
v_lshl_add_u32 v12, v12, 3, v13
v_lshlrev_b32 v13, 4, v{GG}
v_lshl_add_u32 v{VUK}, v12, 13, v13''')
        RC, RX, RXO = 16, 20, 28
        AUK = 96
        a(f'''s_lshl_b32 s3, s{SKQ}, 2
s_add_u32 s3, s3, s{SW}
s_mul_i32 s{SO}, s3, {64 * 6144}
s_lshl_b32 s3, s{SP}, 6
s_add_u32 s{SO}, s{SO}, s3
s_and_b32 s3, s3, 0x3ff
s_and_b32 s{SO2}, s{SW}, 1
s_lshl_b32 s{SO2}, s{SO2}, 5
s_add_u32 s{SO2}, s{SO2}, s3
s_lshl_b32 s3, s{SW}, 12
s_add_u32 m0, s3, {LMOD}
s_waitcnt lgkmcnt(0)
s_load_dword s{TAG}, {s(WS, 2)}, 0
s_cmp_ge_u32 s{ST}, 8
s_cbranch_scc1 Lt_nomod1a
buffer_load_dwordx2 {v(RC, 2)}, v{VC8}, {s(CS, 4)}, 0 offen''')
        self.dma(WM, [(VM, 0)], 4, 1024, 16 * 6144, SO)
        a(f'''buffer_load_dwordx4 {v(RX, 4)}, v{VX}, {s(XS, 4)}, 0 offen
buffer_load_dwordx4 {v(RX + 4, 4)}, v{VX}, {s(XS, 4)}, 0 offen offset:16
buffer_load_dwordx2 {v(RXO, 2)}, v{VXO}, {s(XS, 4)}, s{SO2} offen
Lt_nomod1a:
s_lshl_b32 s{SO}, s{SQD}, 20
s_lshl_b32 s3, s{SH}, 8
s_add_u32 s52, s{SO}, s3
s_lshl_b32 s3, s{SW}, 15
s_add_u32 s{SO}, s52, s3
s_lshl_b32 m0, s{SW}, 10''')
        self.dma(WQ, [(VWQ, 0)], 8, 4096, 131072, SO)
        a(f'''s_lshl_b32 s3, s{SW}, 18
s_add_u32 s{SO}, s52, s3
s_add_u32 s{SO2}, s{SO}, 32768''')
        for T in range(2):
            for kk in range(4):
                a(f'buffer_load_dwordx4 {v(AUK + 16 * T + 4 * kk, 4)}, v{VUK}, {s(WUK, 4)}, s{(SO, SO2)[T]} offen offset:{kk * 64} nt')
        VE1, VE2, VE3, VH2, VE5, VM2 = 32, 33, 34, 35, 36, 37
        NEG = 40
        a(f'''v_mov_b32 v{NEG}, -1
v_mov_b32 v{NEG + 1}, -1
v_mov_b32 v{NEG + 2}, -1
v_mov_b32 v{NEG + 3}, -1
v_lshlrev_b32 v14, 4, v{GG}
v_lshlrev_b32 v15, 3, v{GG}
s_lshl_b32 s3, s{STI}, 8
s_lshl_b32 s53, s{SW}, 6
s_add_u32 s3, s3, s53
s_add_u32 s3, s3, {E3}
v_bfe_u32 v12, v0, 1, 1
v_lshl_add_u32 v13, v12, 15, v14
v_add_u32 v{VE3}, s3, v13
s_lshl_b32 s3, s{SH}, 11
s_add_u32 s3, s3, s53
s_lshl_b32 s54, s{SQD}, 8
s_add_u32 s3, s3, s54
s_add_u32 s3, s3, {H2}
v_and_b32 v13, 1, v0
v_lshl_add_u32 v{VH2}, v13, 10, v14
v_add_u32 v{VH2}, s3, v{VH2}
s_and_b32 s55, s{SW}, 1
s_lshl_b32 s55, s55, 5
s_lshl_b32 s3, s{STI}, 6
s_add_u32 s3, s3, s55
s_add_u32 s3, s3, {E5}
v_bfe_u32 v{VE5}, v0, 2, 1
v_lshl_add_u32 v{VE5}, v{VE5}, 13, v15
v_add_u32 v{VE5}, s3, v{VE5}
s_lshl_b32 s56, s{SX}, 3
s_add_u32 s56, s56, s{ST}
s_sub_u32 s56, s56, 8
s_lshr_b32 s3, s56, 4
s_lshl_b32 s3, s3, 11
s_and_b32 s57, s56, 15
s_lshl_b32 s57, s57, 6
s_add_u32 s3, s3, s57
s_add_u32 s3, s3, s55
s_add_u32 s3, s3, {MOD2}
s_cmp_ge_u32 s{ST}, 8
s_cselect_b32 s3, s3, {OOB}
v_add_u32 v{VM2}, s3, v{VXO}''')
        self.execm(0x00050005)
        a(f'buffer_store_dwordx4 {v(NEG, 4)}, v{VE3}, {s(WS, 4)}, 0 offen sc1')
        self.execm(0x00110011)
        a(f'buffer_store_dwordx2 {v(NEG, 2)}, v{VE5}, {s(WS, 4)}, 0 offen sc1')
        self.execm(0x00030003)
        a(f'buffer_store_dwordx4 {v(NEG, 4)}, v{VH2}, {s(WS, 4)}, 0 offen sc1')
        a(f'buffer_store_dwordx2 {v(NEG, 2)}, v{VM2}, {s(WS, 4)}, 0 offen sc1')
        self.execm(-1)
        NLATE = 20
        VSILW, VSILR, VA64, VAQ0, VAQ1, VG1, VG2 = 44, 45, 46, 47, 48, 49, 50
        a(f'''s_lshr_b32 s3, s{SP}, 4
s_lshl_b32 s3, s3, 2
s_add_u32 s3, s3, s{SKQ}
s_lshl_b32 s3, s3, 11
s_and_b32 s57, s{SP}, 15
s_lshl_b32 s57, s57, 7
s_add_u32 s3, s3, s57
s_add_u32 s3, s3, s53
s_add_u32 s3, s3, {E1}
v_lshl_add_u32 v{VE1}, v13, 12, v14
v_add_u32 v{VE1}, s3, v{VE1}
s_and_b32 s3, s{SQD}, 2
s_add_u32 s3, s3, s{SQD}
s_lshl_b32 s3, s3, 9
s_lshl_b32 s57, s{SH}, 12
s_add_u32 s57, s57, {E2}
s_add_u32 s3, s3, s57
s_lshl_b32 s58, s{SW}, 7
s_add_u32 s3, s3, s58
v_lshl_add_u32 v{VE2}, v12, 10, v14
v_bfe_u32 v12, v0, 2, 1
v_lshl_add_u32 v{VE2}, v12, 6, v{VE2}
v_add_u32 v{VE2}, s3, v{VE2}
v_lshrrev_b32 v12, 7, v0
v_lshl_add_u32 v{VSILW}, v12, 5, v{VC8}
v_add_u32 v{VSILW}, {LSIL}, v{VSILW}
v_mul_u32_u24 v{VSILR}, 1056, v13
v_add_u32 v{VSILR}, v{VSILR}, v14
v_add_u32 v{VSILR}, {LSIL}, v{VSILR}
v_bfe_u32 v51, v0, 2, 2
v_lshl_add_u32 v52, v{GG}, 3, v51
v_lshlrev_b32 v53, 3, v13
v_bfe_u32 v54, v0, 1, 1
v_xor_b32 v55, s{SW}, v{GG}
v_and_b32 v55, 1, v55
v_lshl_or_b32 v55, v55, 1, v54
v_lshl_add_u32 v55, v55, 4, v53
v_lshl_add_u32 v{VA64}, v52, 6, v55
v_xor_b32 v55, s{SW}, v51
v_and_b32 v56, 1, v{GG}
v_lshl_or_b32 v55, v55, 1, v56
v_lshl_or_b32 v55, v55, 1, v54
v_lshl_add_u32 v55, v55, 4, v53
v_lshl_add_u32 v{VAQ0}, v52, 8, v55
v_xor_b32 v{VAQ1}, 32, v{VAQ0}
v_lshlrev_b32 v55, 5, v{GG}
v_lshl_add_u32 v{VG1}, v{JJ}, 11, v55
v_lshl_add_u32 v{VG2}, v{JJ}, 9, v55
s_lshl_b32 s58, s{SQD}, 9
s_add_u32 s58, s58, {E1}
s_waitcnt lgkmcnt(0)
s_add_u32 s{TAG}, s{TAG}, {PHI:#x}''')
        PK = 60
        for r in (0, 1, 4, 5):
            a(f'v_mov_b32 v{PK + r}, s{TAG}')
        self.stamp(13)
        a(f's_cmp_ge_u32 s{ST}, 8\ns_cbranch_scc1 Lt_nomod1b')
        a(f's_waitcnt vmcnt({NLATE + 7})')
        self.stamp(14)
        self.silu(RC, 68, VSILW)
        a(f's_waitcnt vmcnt({NLATE})')
        self.stamp(15)
        SUM, SQ, AM, ACC = 66, 67, 76, 80
        for i in range(4):
            self.unpack4(68, RX + 2 * i)
            for k in range(4):
                if i == 0 and k == 0:
                    a(f'v_mov_b32 v{SUM}, v68\nv_mul_f32 v{SQ}, v68, v68')
                else:
                    a(f'v_add_f32 v{SUM}, v{SUM}, v{68 + k}\nv_fmac_f32 v{SQ}, v{68 + k}, v{68 + k}')
        a('s_waitcnt lgkmcnt(0)\ns_barrier')
        a(f's_cmp_ge_u32 s{SW}, 2\ns_cbranch_scc1 Lt_nomod1b')
        a(f'''s_lshl_b32 s3, s{SKQ}, 9
v_add_u32 v84, s3, v{VSILR}
v_add_u32 v85, {LMOD}, v{VA64}''')
        self.gemv64(8, 85, 84, ACC, 128, 148, '0')
        self.red16('v_add_f32', (SUM, SQ))
        a(f'''v_mov_b32 v68, v{SUM}
v_mov_b32 v69, v{SQ}
v_permlane16_swap_b32 v68, v{SUM}
v_permlane16_swap_b32 v69, v{SQ}
v_add_f32 v{SUM}, v{SUM}, v68
v_add_f32 v{SQ}, v{SQ}, v69
v_mul_f32 v{SUM}, {f32(1 / 512)}, v{SUM}
v_mul_f32 v{SQ}, {f32(1 / 512)}, v{SQ}
v_fma_f32 v{SQ}, -v{SUM}, v{SUM}, v{SQ}
v_max_f32 v{SQ}, 0, v{SQ}
v_add_f32 v{SQ}, {f32(1e-5)}, v{SQ}
v_rsq_f32 v{SQ}, v{SQ}
v_mov_b32 v68, v{SUM}
v_cmp_eq_u32 vcc, 1, v13
v_mov_b32 v69, v{SQ}
v_permlane32_swap_b32 v{SUM}, v68
v_permlane32_swap_b32 v{SQ}, v69
v_cndmask_b32 v{SUM}, v{SUM}, v68, vcc
v_cndmask_b32 v{SQ}, v{SQ}, v69, vcc''')
        self.unpack4(AM, RXO)
        a(f's_cmp_lt_u32 s{SP}, 16\ns_cbranch_scc1 Lt_sa')
        a(f's_cmp_eq_u32 s{SKQ}, 0\ns_cselect_b32 s3, 1.0, 0')
        for r in range(4):
            a(f'v_sub_f32 v{AM + r}, v{AM + r}, v{SUM}')
        for r in range(4):
            a(f'v_mul_f32 v{AM + r}, v{AM + r}, v{SQ}')
        for r in range(4):
            a(f'v_add_f32 v{ACC + r}, s3, v{ACC + r}')
        for r in range(4):
            a(f'v_mul_f32 v{ACC + r}, v{AM + r}, v{ACC + r}')
        a('Lt_sa:')
        a(f'v_cvt_pk_bf16_f32 v{PK + 2}, v{ACC}, v{ACC + 1}\nv_cvt_pk_bf16_f32 v{PK + 3}, v{ACC + 2}, v{ACC + 3}')
        self.execm(3)
        a(f'''buffer_store_dwordx4 {v(PK, 4)}, v{VE1}, {s(WS, 4)}, 0 offen sc1
s_lshl_b64 exec, exec, 16
buffer_store_dwordx4 {v(PK + 2, 4)}, v{VE1}, {s(WS, 4)}, 0 offen sc1
s_mov_b64 exec, -1''')
        self.stamp(1)
        a('s_waitcnt vmcnt(2)\ns_branch Lt_join\nLt_nomod1b:\ns_waitcnt vmcnt(0)\nLt_join:\ns_barrier')
        self.stamp(2)
        a(f'''s_lshl_b32 s3, s{STI}, 2
s_add_u32 s3, s3, {FLAGS}
s_cmp_eq_u32 s{SW}, 3
s_cselect_b32 s3, s3, {OOB}
v_mov_b32 v12, s3
s_mov_b64 exec, 1
buffer_store_dword v{PK}, v12, {s(WS, 4)}, 0 offen sc1
s_mov_b64 exec, -1''')
        AQ, BG, D0, D1, XR = 128, 160, 68, 72, 76
        self.preread([f'ds_read_b64_tr_b16 {v(AQ + 16 * T + 4 * kk + 2 * e, 2)}, v{(VAQ0, VAQ1)[T]} offset:{kk * 8192 + e * 1024}'
                      for kk in range(4) for T in range(2) for e in range(2)])

        def gather8(vo, so):
            def loads():
                for kk in range(4):
                    for hf in range(2):
                        a(f'buffer_load_dwordx4 {v(BG + 8 * kk + 4 * hf, 4)}, v{vo}, {s(WS, 4)}, s{so} offen offset:{kk * 128 + hf * 16} sc1')
                a('s_waitcnt vmcnt(0)')
            self.execm(0x00ff00ff)
            self.poll(loads, lambda: self.chk_tag([BG + 8 * kk + o for kk in range(4) for o in (0, 7)], 12), 'e%d' % so)
            self.execm(-1)

        def mm8(A):
            for kk in range(4):
                for T in range(2):
                    d = (D0, D1)[T]
                    a(f'v_mfma_f32_16x16x32_bf16 {v(d, 4)}, {v(A + 16 * T + 4 * kk, 4)}, {v(BG + 8 * kk + 2, 4)}, {v(d, 4) if kk else 0}')
        gather8(VG1, 58)
        self.stamp(3)
        a('s_waitcnt lgkmcnt(0)')
        mm8(AQ)
        self.fold2(D0, D1, XR)
        a(f'v_cvt_pk_bf16_f32 v{PK + 2}, v{XR}, v{XR + 1}\nv_cvt_pk_bf16_f32 v{PK + 3}, v{XR + 2}, v{XR + 3}')
        self.execm(0x55)
        a(f'''buffer_store_dwordx4 {v(PK, 4)}, v{VE2}, {s(WS, 4)}, 0 offen sc1
s_lshl_b64 exec, exec, 16
buffer_store_dwordx4 {v(PK + 2, 4)}, v{VE2}, {s(WS, 4)}, 0 offen sc1''')
        gather8(VG2, 57)
        self.stamp(4)
        mm8(AUK)
        self.fold2(D0, D1, XR)
        a(f'''v_cvt_pk_bf16_f32 v80, v{XR}, v{XR + 1}
v_cvt_pk_bf16_f32 v81, v{XR + 2}, v{XR + 3}
v_mov_b32_dpp v82, v80 row_shl:4 {DPPM}
v_mov_b32_dpp v83, v81 row_shl:4 {DPPM}
v_min_u32 v80, -2, v80''')
        self.execm(0x00050005)
        a(f'buffer_store_dwordx4 v[80:83], v{VE3}, {s(WS, 4)}, 0 offen sc1')
        self.execm(-1)
        self.stamp(5)
        a(f'''v_lshlrev_b32 v12, 2, v{GG}
v_xor_b32 v12, v12, v{JJ}
v_lshlrev_b32 v12, 4, v12
v_lshl_add_u32 v12, v56, 18, v12
v_lshrrev_b32 v55, 5, v{L_}
v_lshl_add_u32 v12, v55, 17, v12
s_lshr_b32 s3, s{SW}, 1
s_lshl_b32 s3, s3, 19
s_add_u32 s{SO}, s52, s3
s_lshl_b32 s3, s55, 11
s_add_u32 s{SO}, s{SO}, s3
s_lshl_b32 s59, s{SW}, 13
s_add_u32 m0, s59, {LWUV}''')
        self.dma(WUV, [(12, 0)], 8, 1024, 8192, SO)
        a(f'''v_lshrrev_b32 v55, 2, v{L_}
v_lshl_add_u32 v12, v55, 10, v{CK64}
s_lshl_b32 s{SO}, s{SX}, 19
s_lshl_b32 s3, s{SW}, 17
s_add_u32 s{SO}, s{SO}, s3
s_lshl_b32 s3, s{ST}, 6
s_add_u32 s{SO}, s{SO}, s3
s_add_u32 m0, s59, {LWO}''')
        self.dma(WO, [(12, 0)], 8, 1024, 16384, SO)
        a(f'''s_cmp_lt_u32 s{ST}, 8
s_cbranch_scc1 Lt_nomod2a
buffer_load_dwordx2 {v(RC, 2)}, v{VC8}, {s(CS, 4)}, 0 offen
s_mul_i32 s{SO}, s{SW}, {128 * 6144}
s_lshl_b32 s3, s56, 6
s_add_u32 s{SO}, s{SO}, s3
s_add_u32 s{SO}, s{SO}, 2048
s_add_u32 m0, s59, {LMOD}''')
        self.dma(WM, [(VM, 0)], 8, 1024, 16 * 6144, SO)
        a('s_waitcnt vmcnt(8)')
        self.silu(RC, 68, VSILW)
        a('Lt_nomod2a:')
        VGT, VALW, VALR, VH1, VCCW, VCCR, VAUV, VH2G = 5, 7, 9, 10, 16, 17, 18, 19
        SEL = 20
        a(f'''v_lshlrev_b32 v{VGT}, 5, v{L_}
v_lshlrev_b32 v{VALW}, 2, v0
v_add_u32 v{VALW}, {LAL}, v{VALW}
v_and_b32 v12, 1, v51
v_lshlrev_b32 v55, 5, v{GG}
v_lshl_add_u32 v12, v12, 7, v55
s_lshl_b32 s3, s{SW}, 8
s_add_u32 s3, s3, {LAL}
v_add_u32 v{VALR}, s3, v12
v_bfe_u32 v12, v0, 3, 1
v_and_b32 v55, 7, v0
v_lshlrev_b32 v55, 3, v55
v_add_u32 v55, s53, v55
v_lshl_add_u32 v{VH1}, v12, 14, v55
v_lshl_add_u32 v{VH1}, v{GG}, 12, v{VH1}
v_mul_u32_u24 v{VCCW}, 288, v12
v_add_u32 v{VCCW}, v{VCCW}, v55
v_add_u32 v{VCCW}, {LCC}, v{VCCW}
v_cmp_eq_u32 vcc, v12, v56
v_mov_b32 v55, {LDUMP}
v_mul_u32_u24 v{VCCR}, 288, v13
v_cndmask_b32 v{VCCW}, v55, v{VCCW}, vcc
v_add_u32 v{VCCR}, v{VCCR}, v14
v_add_u32 v{VCCR}, {LCC}, v{VCCR}
v_xor_b32 v12, s{SW}, v51
v_and_b32 v55, 3, v0
v_lshl_or_b32 v12, v12, 2, v55
v_lshlrev_b32 v12, 4, v12
v_lshl_add_u32 v{VAUV}, v52, 8, v12
v_add_u32 v{VAUV}, {LWUV}, v{VAUV}
v_lshl_add_u32 v{VH2G}, v{JJ}, 8, v14
v_cmp_eq_u32 vcc, 1, v13
v_mov_b32 v24, 0x0c0c0100
v_mov_b32 v25, 0x01000c0c
v_mov_b32 v26, 0x0c0c0302
v_mov_b32 v27, 0x03020c0c
v_cndmask_b32 v24, v24, v25, vcc
v_cndmask_b32 v26, v26, v27, vcc
v_cmp_eq_u32 vcc, 1, v54
v_mov_b32 v25, 0x0c0c0c0c
s_lshl_b32 s{SO}, s{SH}, 11
s_add_u32 s{SO}, s{SO}, {GATE}
v_cndmask_b32 v{SEL}, v24, v25, vcc
v_cndmask_b32 v{SEL + 1}, v25, v24, vcc
v_cndmask_b32 v{SEL + 2}, v26, v25, vcc
v_cndmask_b32 v{SEL + 3}, v25, v26, vcc
s_lshl_b32 s{SO2}, s{STI}, 15
s_add_u32 s{SO2}, s{SO2}, {H1}
s_lshl_b32 s57, s{SX}, 13
s_add_u32 s57, s57, {H2}
s_add_u32 s58, s57, 4096
s_waitcnt vmcnt(0) lgkmcnt(0)
s_barrier''')
        self.stamp(6)
        AUV, AWO = 96, 192
        a(f's_cmp_ge_u32 s{SW}, 2\ns_cbranch_scc1 Lt_nowo')
        a(f's_cmp_lt_u32 s{ST}, 8\ns_cbranch_scc1 Lt_nomod2b')
        a(f'v_add_u32 v85, {LMOD}, v{VA64}')
        self.gemv64(16, 85, VSILR, ACC, 128, 148, '0')
        a(f'''v_cvt_pk_bf16_f32 v84, v{ACC}, v{ACC + 1}
v_cvt_pk_bf16_f32 v85, v{ACC + 2}, v{ACC + 3}
v_min_u32 v84, -2, v84''')
        self.execm(0x00030003)
        a(f'buffer_store_dwordx2 v[84:85], v{VM2}, {s(WS, 4)}, 0 offen sc1')
        self.execm(-1)
        a(f'Lt_nomod2b:\nv_add_u32 v12, {LWO}, v{VA64}')
        self.preread([f'ds_read_b64_tr_b16 {v(AWO + 4 * kk + 2 * e, 2)}, v12 offset:{kk * 2048 + e * 256}'
                      for kk in range(16) for e in range(2)])
        a('s_waitcnt lgkmcnt(0)\nLt_nowo:')
        self.preread([f'ds_read_b64_tr_b16 {v(AUV + 16 * T + 4 * kk + 2 * e, 2)}, v{VAUV} offset:{kk * 8192 + e * 1024 + T * 8}'
                      for kk in range(4) for T in range(2) for e in range(2)])
        GT = 68

        def gl():
            a(f'buffer_load_dwordx4 {v(GT, 4)}, v{VGT}, {s(WS, 4)}, s{SO} offen sc1')
            a(f'buffer_load_dwordx4 {v(GT + 4, 4)}, v{VGT}, {s(WS, 4)}, s{SO} offen offset:16 sc1')
            a('s_waitcnt vmcnt(0)')
        self.poll(gl, lambda: self.chk_tag([GT + 2, GT + 6], 12), 'gate')
        self.stamp(7)
        a(f'v_max_f32 v76, v{GT}, v{GT + 4}')
        self.red16('v_max_f32', (76,))
        a(f'''v_mov_b32 v77, v76
v_permlane16_swap_b32 v76, v77
v_max_f32 v76, v76, v77
v_sub_f32 v{GT}, v{GT}, v76
v_sub_f32 v{GT + 4}, v{GT + 4}, v76
v_exp_f32 v{GT}, v{GT}
v_exp_f32 v{GT + 4}, v{GT + 4}
v_mul_f32 v76, v{GT}, v{GT + 1}
v_fmac_f32 v76, v{GT + 4}, v{GT + 5}''')
        self.red16('v_add_f32', (76,))
        WA, AR, BH = 84, 128, 160
        a(f'''v_mov_b32 v77, v76
v_permlane16_swap_b32 v76, v77
v_add_f32 v76, v76, v77
v_rcp_f32 v76, v76
v_mul_f32 v{GT}, v{GT}, v76
v_mul_f32 v{GT + 4}, v{GT + 4}, v76
v_cvt_pk_bf16_f32 v76, v{GT}, v{GT + 4}
s_waitcnt lgkmcnt(0)
ds_write_b32 v{VALW}, v76
ds_read_b128 {v(WA, 4)}, v{VALR}
ds_read_b128 {v(WA + 4, 4)}, v{VALR} offset:16
s_waitcnt lgkmcnt(0)''')
        for u in range(8):
            for d in range(4):
                a(f'v_perm_b32 v{AR + 4 * u + d}, v{WA + u}, v{WA + u}, v{SEL + d}')

        def hl():
            for i in range(16):
                a(f'buffer_load_dwordx2 {v(BH + 2 * i, 2)}, v{VH1}, {s(WS, 4)}, s{SO2} offen offset:{i * 256} sc1')
            a('s_waitcnt vmcnt(0)')
        self.poll(hl, lambda: self.chk_sent([BH + 2 * i for i in range(16)], 12), 'h1')
        self.stamp(8)
        for u in range(8):
            a(f'v_mfma_f32_16x16x32_bf16 {v(D0, 4)}, {v(AR + 4 * u, 4)}, {v(BH + 4 * u, 4)}, {v(D0, 4) if u else 0}')
        a(f'''v_cvt_pk_bf16_f32 v76, v{D0}, v{D0 + 1}
v_cvt_pk_bf16_f32 v77, v{D0 + 2}, v{D0 + 3}
ds_write_b64 v{VCCW}, v[76:77]
s_waitcnt lgkmcnt(0)
s_barrier''')
        BC = 128
        for kk in range(4):
            a(f'ds_read_b128 {v(BC + 4 * kk, 4)}, v{VCCR} offset:{kk * 64}')
        for kk in range(4):
            a(f's_waitcnt lgkmcnt({3 - kk})')
            for T in range(2):
                d = (D0, D1)[T]
                a(f'v_mfma_f32_16x16x32_bf16 {v(d, 4)}, {v(AUV + 16 * T + 4 * kk, 4)}, {v(BC + 4 * kk, 4)}, {v(d, 4) if kk else 0}')
        for i in range(4):
            a(f'v_cvt_pk_bf16_f32 v{80 + i}, v{D0 + 2 * i}, v{D0 + 2 * i + 1}')
        a('v_min_u32 v80, -2, v80')
        self.execm(0x00030003)
        a(f'buffer_store_dwordx4 v[80:83], v{VH2}, {s(WS, 4)}, 0 offen sc1')
        self.stamp(9)
        a(f's_cmp_lt_u32 s{SW}, 2\ns_cbranch_scc1 Lt_wo')
        self.end()
        a('Lt_wo:')
        BO = 128

        def ol():
            for kk in range(16):
                a(f'buffer_load_dwordx4 {v(BO + 4 * kk, 4)}, v{VH2G}, {s(WS, 4)}, s{57 + (kk >> 3)} offen offset:{((kk >> 2) & 1) * 2048 + (kk & 3) * 64} sc1')
            a('s_waitcnt vmcnt(0)')
        self.execm(0x00ff00ff)
        self.poll(ol, lambda: self.chk_sent([BO + 4 * kk for kk in range(16)], 12), 'h2')
        self.execm(-1)
        self.stamp(10)
        for kk in range(16):
            a(f'v_mfma_f32_16x16x32_bf16 {v(D0, 4)}, {v(AWO + 4 * kk, 4)}, {v(BO + 4 * kk, 4)}, {v(D0, 4) if kk else 0}')
        for m in (X1, X2):
            for r in range(4):
                a(f'v_add_f32_dpp v{D0 + r}, v{D0 + r}, v{D0 + r} {m} {DPPM}')
        a(f'''v_cvt_pk_bf16_f32 v76, v{D0}, v{D0 + 1}
v_cvt_pk_bf16_f32 v77, v{D0 + 2}, v{D0 + 3}
v_min_u32 v76, -2, v76''')
        self.execm(0x00110011)
        a(f'buffer_store_dwordx2 v[76:77], v{VE5}, {s(WS, 4)}, 0 offen sc1')
        self.stamp(11)
        self.end()

    def role_a(self):
        a = self.a
        L_, JJ, GG = 2, 3, 4
        CKV, W1, W2, OUT = S0, S1, S2, S3
        LQB = 131072
        SAI, SO, SO2, SFI, SK = 45, 46, 47, 48, 50
        SH1 = 52
        a('Lrole_a:')
        self.pend = []
        self.srd(CKV, 8, 16777216); self.srd(W1, 56, 1835008); self.srd(W2, 64, 1835008)
        self.srd(OUT, 88, 2048); self.srd(XS, 0, 2048)
        a('\n'.join(self.pend))
        VD = 5
        a(f'''s_lshl_b32 s{SAI}, s{SX}, 4
s_add_u32 s{SAI}, s{SAI}, s{SJ}
v_xor_b32 v12, s{SW}, v{L_}
v_lshlrev_b32 v{VD}, 4, v12
v_xor_b32 v{VD + 1}, 64, v{VD}
v_xor_b32 v{VD + 2}, 0x80, v{VD}
v_xor_b32 v{VD + 3}, 0xc0, v{VD}
s_lshl_b32 s{SO}, s{SAI}, 17
s_lshl_b32 s49, s{SW}, 12
s_add_u32 s{SO}, s{SO}, s49
s_mov_b32 m0, s49
s_waitcnt lgkmcnt(0)
s_load_dword s{TAG}, {s(WS, 2)}, 0''')
        if not self.o.get('nockv'):
            self.dma(CKV, [(VD + i, 1024 * i) for i in range(4)], 8, 16384, 16384, SO)
        NEG, VE7, VH1 = 16, 9, 10
        a(f'''v_mov_b32 v{NEG}, -1
v_mov_b32 v{NEG + 1}, -1
v_mov_b32 v{NEG + 2}, -1
v_mov_b32 v{NEG + 3}, -1
v_lshlrev_b32 v12, 4, v{JJ}
v_lshl_add_u32 v12, v{GG}, 17, v12
s_lshl_b32 s{SO}, s{SW}, 15
s_lshl_b32 s3, s{SAI}, 8
s_add_u32 s{SO}, s{SO}, s3
s_add_u32 s{SH1}, s{SO}, {H1}
s_mov_b32 s{SO}, s{SH1}
s_mov_b32 s3, {1 if self.o.get('noclr') else 8}
La_clr:
buffer_store_dwordx4 {v(NEG, 4)}, v12, {s(WS, 4)}, s{SO} offen sc1
s_add_u32 s{SO}, s{SO}, {4 * 131072}
s_sub_u32 s3, s3, 1
s_cmp_lg_u32 s3, 0
s_cbranch_scc1 La_clr
s_mul_i32 s{SFI}, s{SX}, 7
s_add_u32 s{SFI}, s{SFI}, s{SJ}
s_mul_i32 s3, s{SW}, {4 * 7168}
s_lshl_b32 s{SO}, s{SFI}, 7
s_add_u32 s3, s3, s{SO}
s_add_u32 s3, s3, {E7}
s_cmp_lt_u32 s{SJ}, 7
s_cselect_b32 s3, s3, {OOB}
v_bfe_u32 v20, v0, 2, 2
v_and_b32 v21, 1, v0
v_bfe_u32 v22, v0, 1, 1
v_mul_u32_u24 v{VE7}, 7168, v20
v_lshl_add_u32 v{VE7}, v21, 6, v{VE7}
v_lshl_add_u32 v{VE7}, v22, 5, v{VE7}
v_lshl_add_u32 v{VE7}, v{GG}, 3, v{VE7}
v_add_u32 v{VE7}, s3, v{VE7}
buffer_store_dwordx2 {v(NEG, 2)}, v{VE7}, {s(WS, 4)}, 0 offen sc1''')
        for i in range(1, 8):
            a(f's_add_u32 s{SH1 + i}, s{SH1}, {(8 * (i >> 1) + 2 * (i & 1)) * 131072}')
        AK, AQ, AV = 24, 32, 40
        VPW, VPR, VMW, VMR, VCK, VFL, VGS = 56, 57, 58, 59, 60, 61, 62
        a(f'''v_lshrrev_b32 v23, 5, v{L_}
v_and_b32 v13, 1, v{GG}
v_lshl_add_u32 v12, v23, 2, v13
v_lshlrev_b32 v14, 3, v{JJ}
v_lshl_add_u32 v{VH1}, v12, 17, v14
v_and_b32 v14, 31, v0
v_and_b32 v12, 3, v0
v_lshl_or_b32 v12, v12, 2, v20
v_xor_b32 v12, v12, v23
v_lshlrev_b32 v12, 4, v12
v_lshl_add_u32 v12, v14, 10, v12
s_lshl_b32 s3, s{SW}, 15''')
        for t in range(8):
            a(f'v_xor_b32 v15, {32 * t}, v12\nv_add_u32 v{AK + t}, s3, v15\nv_add_u32 v{AQ + t}, {LQB}, v15')
        a(f'''v_lshl_or_b32 v12, v20, 1, v13
v_xor_b32 v15, v22, v23
v_lshl_or_b32 v12, v12, 1, v15
v_lshlrev_b32 v12, 4, v12
v_lshl_add_u32 v12, v21, 3, v12
v_lshl_add_u32 v15, v23, 2, v20
v_lshl_add_u32 v12, v15, 10, v12
s_lshl_b32 s3, s{SW}, 8
v_add_u32 v12, s3, v12''')
        for T in range(4):
            for e in range(2):
                r = AV + 4 * T + 2 * e
                a(f'v_xor_b32 v{r}, {64 * T + 32 * e + 8192 * e}, v12\nv_add_u32 v{r + 1}, 0x10000, v{r}')
        a(f'''v_lshlrev_b32 v12, 4, v14
v_add_u32 v{VMR}, {LQB}, v12
v_lshl_add_u32 v{VPR}, v23, 10, v{VMR}
v_add_u32 v{VPW}, s49, v{VPR}
s_lshl_b32 s3, s{SW}, 2
v_add_u32 v{VMW}, s3, v{VPR}
s_add_u32 s51, s49, {LQB}
v_lshl_add_u32 v{VCK}, v{L_}, 4, s51
v_lshlrev_b32 v{VFL}, 3, v{L_}
s_lshl_b32 s3, s{SAI}, 4
s_add_u32 s3, s3, {GATE}
v_lshl_add_u32 v{VGS}, v14, 11, s3
s_lshr_b32 s{SO}, s{SX}, 2
s_lshl_b32 s{SO}, s{SO}, 15
s_add_u32 s{SO}, s{SO}, s49
s_add_u32 s{SO}, s{SO}, {E3}
s_add_u32 s{SO2}, s{SO}, 16384
s_mov_b32 s{SK}, {f32(128 ** -0.5 * math.log2(math.e))}
s_movk_i32 s60, {FLAGS}
s_waitcnt lgkmcnt(0)
s_add_u32 s{TAG}, s{TAG}, {PHI:#x}''')
        GV = 64
        a(f'v_mov_b32 v{GV + 2}, s{TAG}\nv_mov_b32 v{GV + 3}, s{TAG}')

        self.stamp(13)
        if self.stamps:
            a('s_waitcnt vmcnt(9)')
            self.stamp(14)
            a('s_waitcnt vmcnt(0)')
            self.stamp(15)

        def fl():
            a(f'buffer_load_dwordx2 v[68:69], v{VFL}, {s(WS, 4)}, s60 offen sc1\ns_waitcnt vmcnt(0)')
        self.poll(fl, lambda: self.chk_tag([68, 69], 12), 'flag')
        self.stamp(1)

        def ql():
            for h in range(2):
                a(f's_add_u32 m0, s51, {16384 * h}')
                for i in range(4):
                    a(f'buffer_load_dwordx4 v{VD + i}, {s(WS, 4)}, s{(SO, SO2)[h]} offen offset:{1024 * i} sc1 lds')
            a('s_waitcnt vmcnt(0)')
            for h in range(2):
                for i in range(4):
                    a(f'ds_read_b32 v{68 + 4 * h + i}, v{VCK} offset:{16384 * h + 1024 * i}')
            a('s_waitcnt lgkmcnt(0)')
        self.poll(ql, lambda: self.chk_sent(range(68, 76), 12), 'q')
        a('s_barrier')
        self.stamp(2)
        SA, KF, QF = 80, 96, 112
        q = LQ(a)

        def rdqk(t):
            r = 4 * (t % 4)
            q.issue(f'ds_read_b128 {v(KF + r, 4)}, v{AK + t % 8} offset:{256 * (t // 8)}')
            q.issue(f'ds_read_b128 {v(QF + r, 4)}, v{AQ + t % 8} offset:{256 * (t // 8)}', t)
        for t in range(3):
            rdqk(t)
        for t in range(32):
            q.wait(t)
            r = 4 * (t % 4)
            a(f'v_mfma_f32_32x32x16_bf16 {v(SA, 16)}, {v(KF + r, 4)}, {v(QF + r, 4)}, {v(SA, 16) if t else 0}')
            if t + 3 < 32:
                rdqk(t + 3)
            if t == 16:
                a('s_barrier')
        VF, NV = 128, 6
        order = [(ph, u, T) for ph in range(2) for u in range(8) for T in (2 * ph, 2 * ph + 1)]

        def rdv(m):
            ph, u, T = order[m]
            r = VF + 4 * (m % NV)
            for e in range(2):
                q.issue(f'ds_read_b64_tr_b16 {v(r + 2 * e, 2)}, v{AV + 4 * T + 2 * e + (u >> 2)} offset:{16384 * (u & 3)}',
                        ('v', m) if e else None)
        for m in range(NV - 1):
            rdv(m)
        a(f'v_max3_f32 v12, v{SA}, v{SA + 1}, v{SA + 2}\nv_max3_f32 v13, v{SA + 3}, v{SA + 4}, v{SA + 5}')
        a(f'v_max3_f32 v12, v12, v{SA + 6}, v{SA + 7}\nv_max3_f32 v13, v13, v{SA + 8}, v{SA + 9}')
        a(f'v_max3_f32 v12, v12, v{SA + 10}, v{SA + 11}\nv_max3_f32 v13, v13, v{SA + 12}, v{SA + 13}')
        a(f'v_max3_f32 v12, v12, v{SA + 14}, v{SA + 15}\nv_max_f32 v12, v12, v13')
        q.issue(f'ds_write_b32 v{VMW}, v12 offset:{16 * 1024}')
        q.drain()
        a('s_barrier')
        self.stamp(3)
        a(f'''ds_read_b128 v[68:71], v{VMR} offset:{16 * 1024}
ds_read_b128 v[72:75], v{VMR} offset:{17 * 1024}
s_waitcnt lgkmcnt(1)
v_max3_f32 v12, v68, v69, v70
s_waitcnt lgkmcnt(0)
v_max3_f32 v12, v12, v71, v72
v_max3_f32 v12, v12, v73, v74
v_max_f32 v12, v12, v75
v_mul_f32 v{GV}, s{SK}, v12''')
        PW = 96
        for i in range(0, 16, 2):
            a(f'v_pk_fma_f32 {v(SA + i, 2)}, {v(SA + i, 2)}, {s(SK, 2)}, {v(GV, 2)} op_sel_hi:[1,0,0] neg_lo:[0,0,1] neg_hi:[0,0,1]')
        for hlf in range(2):
            for i in range(8):
                a(f'v_exp_f32 v{SA + 8 * hlf + i}, v{SA + 8 * hlf + i}')
            for i in range(4):
                a(f'v_cvt_pk_bf16_f32 v{PW + 4 * hlf + i}, v{SA + 8 * hlf + 2 * i}, v{SA + 8 * hlf + 2 * i + 1}')
            a(f'ds_write_b128 v{VPW}, {v(PW + 4 * hlf, 4)} offset:{2048 * hlf}')
        for n in (8, 4, 2):
            for i in range(0, n, 2):
                a(f'v_pk_add_f32 {v(SA + i, 2)}, {v(SA + i, 2)}, {v(SA + n + i, 2)}')
        a(f'''v_add_f32 v12, v{SA}, v{SA + 1}
ds_write_b32 v{VMW}, v12 offset:{18 * 1024}
s_waitcnt lgkmcnt(0)
s_barrier''')
        self.stamp(4)
        PF, DA, PKR = 96, 160, 224
        for u in range(8):
            q.issue(f'ds_read_b128 {v(PF + 4 * u, 4)}, v{VPR} offset:{2048 * u}', ('p', u))
        q.issue(f'ds_read_b128 v[68:71], v{VMR} offset:{18 * 1024}')
        q.issue(f'ds_read_b128 v[72:75], v{VMR} offset:{19 * 1024}', 'l')

        def epi(ph):
            o = []
            d0, d1 = DA + 32 * ph, DA + 32 * ph + 16
            pk = PKR + 16 * ph
            for r in range(0, 16, 4):
                for i in range(4):
                    o.append(f'v_cvt_pk_bf16_f32 v{pk + r + i}, v{d0 + r + i}, v{d1 + r + i}')
                for i in (0, 2):
                    o.append(f'v_permlane16_swap_b32 v{pk + r + i}, v{pk + r + i + 1}')
                for i in (0, 2):
                    o.append(f'v_min_u32 v{pk + r + i}, -2, v{pk + r + i}')
                for i in (0, 2):
                    o.append(f'buffer_store_dwordx2 {v(pk + r + i, 2)}, v{VH1}, {s(WS, 4)}, s{SH1 + (r + i) // 2} offen offset:{128 * ph} sc1')
            return o
        e0 = epi(0)
        for m in range(32):
            ph, u, T = order[m]
            q.wait(('p', u)); q.wait(('v', m))
            d = DA + 16 * T
            a(f'v_mfma_f32_32x32x16_bf16 {v(d, 16)}, {v(PF + 4 * u, 4)}, {v(VF + 4 * (m % NV), 4)}, {v(d, 16) if u else 0}')
            if m == 2:
                q.wait('l')
            if m + NV - 1 < 32:
                rdv(m + NV - 1)
            if m == 2:
                a('v_pk_add_f32 v[68:69], v[68:69], v[70:71]\nv_pk_add_f32 v[72:73], v[72:73], v[74:75]')
            if m == 3:
                a(f'v_pk_add_f32 v[68:69], v[68:69], v[72:73]\ns_lshl_b32 s3, s{SW}, 3\nv_add_f32 v{GV + 1}, v68, v69')
            if m == 4:
                a(f'''s_lshl_b64 exec, 0xff, s3
buffer_store_dwordx4 {v(GV, 4)}, v{VGS}, {s(WS, 4)}, 0 offen sc1
s_mov_b64 exec, -1''')
            if m >= 18:
                for _ in range(4):
                    if e0:
                        a(e0.pop(0))
        assert not e0
        self.stamp(5)
        a('\n'.join(epi(1)))
        self.stamp(6)
        a(f's_cmp_lt_u32 s{SJ}, 7\ns_cbranch_scc1 Lrole_f')
        a(f's_sub_u32 s3, s{SJ}, 7\ns_lshl_b32 s61, s{SW}, 1\ns_or_b32 s61, s61, s3\ns_cmp_lt_u32 s61, 2\ns_cbranch_scc1 Lrole_z')
        self.end()

        LW1, LW2, LH2, LST, LF = 0, 32768, 65536, 69632, 70656
        a(f'''Lrole_f:
v_lshrrev_b32 v12, 4, v{L_}
v_and_b32 v12, 2, v12
v_and_b32 v14, 3, v0
v_xor_b32 v12, v12, v14
v_lshlrev_b32 v12, 4, v12
v_lshrrev_b32 v15, 2, v{L_}
s_movk_i32 s3, 3584
v_mad_u32_u24 v24, v15, s3, v12
v_lshlrev_b32 v12, 2, v{GG}
v_xor_b32 v12, v12, v{JJ}
v_lshlrev_b32 v12, 4, v12
v_lshl_add_u32 v25, v{GG}, 10, v12
s_mul_i32 s{SO}, s{SW}, {128 * 3584}
s_lshl_b32 s3, s{SFI}, 6
s_add_u32 s{SO}, s{SO}, s3
s_lshl_b32 s49, s{SW}, 13
s_mov_b32 m0, s49
s_barrier''')
        self.dma(W1, [(24, 0)], 8, 1024, 16 * 3584, SO)
        a(f'''s_lshl_b32 s{SO}, s{SFI}, 15
s_lshl_b32 s51, s{SW}, 8
s_add_u32 s{SO}, s{SO}, s51
s_add_u32 m0, s49, {LW2}''')
        self.dma(W2, [(25, 0)], 8, 1024, 4096, SO)
        VMO, VE5G, VA64, VA2, VSTW, VSTR, VHW, VHR, VFW, VFR = 24, 25, 26, 27, 28, 29, 30, 31, 32, 33
        CA = 36
        a(f'''v_and_b32 v13, 1, v{GG}
v_lshlrev_b32 v12, 4, v{JJ}
v_add_u32 v12, s51, v12
v_lshl_add_u32 v{VE5G}, v{GG}, 12, v12
v_lshl_add_u32 v12, v13, 3, v12
v_lshl_add_u32 v{VMO}, v23, 10, v12
v_mul_u32_u24 v{VHW}, 1056, v23
v_add_u32 v{VHW}, v{VHW}, v12
v_add_u32 v{VHW}, {LH2}, v{VHW}
v_lshlrev_b32 v14, 4, v{GG}
v_mul_u32_u24 v{VHR}, 1056, v21
v_add_u32 v{VHR}, v{VHR}, v14
v_add_u32 v{VHR}, {LH2}, v{VHR}
v_mul_u32_u24 v15, 96, v21
v_add_u32 v15, {LF}, v15
v_add_u32 v{VFR}, v15, v14
v_lshl_add_u32 v{VFW}, v{GG}, 3, v15
s_lshl_b32 s3, s{SW}, 5
v_add_u32 v{VFW}, s3, v{VFW}
s_lshl_b32 s3, s{SW}, 2
s_add_u32 s3, s3, {LST}
v_add_u32 v{VSTW}, s3, v14
v_lshlrev_b32 v{VSTR}, 5, v23
v_add_u32 v{VSTR}, {LST}, v{VSTR}
v_lshl_add_u32 v15, v{GG}, 3, v20
v_xor_b32 v12, s{SW}, v{GG}
v_and_b32 v12, 1, v12
v_lshl_or_b32 v12, v12, 1, v22
v_lshlrev_b32 v12, 4, v12
v_lshl_add_u32 v12, v21, 3, v12
v_lshl_add_u32 v{VA64}, v15, 6, v12
v_lshl_or_b32 v12, v20, 2, v22
v_lshlrev_b32 v12, 4, v12
v_lshl_add_u32 v12, v21, 3, v12
v_lshl_add_u32 v{VA2}, v15, 8, v12
s_add_u32 s3, s49, {LW2}
v_add_u32 v{VA2}, s3, v{VA2}
v_lshlrev_b32 v12, 4, v21
s_movk_i32 s3, 0x3f80
v_lshlrev_b32 v12, v12, s3
v_lshrrev_b32 v14, 1, v{JJ}
v_lshlrev_b32 v15, 2, v23
v_sub_u32 v14, v14, v15''')
        for d in range(4):
            a(f'v_cmp_eq_u32 vcc, {d}, v14\nv_cndmask_b32 v{CA + d}, 0, v12, vcc')
        BF = 192
        for i in range(0, 32, 2):
            a(f'v_mov_b64 {v(BF + i, 2)}, 0')
        a(f's_mov_b32 s{SO}, {MOD2}\ns_mov_b32 s{SO2}, {MOD2 + 4096}\ns_mov_b32 s60, {E5}')
        a(f'buffer_load_dwordx2 v[46:47], v{VMO}, {s(XS, 4)}, 0 offen')

        def ml():
            a(f'''buffer_load_dwordx2 v[40:41], v{VMO}, {s(WS, 4)}, s{SO} offen sc1
buffer_load_dwordx2 v[42:43], v{VMO}, {s(WS, 4)}, s{SO} offen offset:2048 sc1
buffer_load_dwordx2 v[44:45], v{VMO}, {s(WS, 4)}, s{SO2} offen sc1
s_waitcnt vmcnt(0)''')
        self.poll(ml, lambda: self.chk_sent([40, 42, 44], 12))
        a('s_barrier')
        self.stamp(7)
        GA, SB, CB, XX = 48, 52, 56, 60
        A1, A2 = 96, 160
        for T in range(8):
            a(f'v_xor_b32 v{64 + T}, {32 * T}, v{VA2}')
        self.preread([f'ds_read_b64_tr_b16 {v(A1 + 4 * kk + 2 * e, 2)}, v{VA64} offset:{kk * 2048 + e * 256}'
                      for kk in range(16) for e in range(2)] +
                     [f'ds_read_b64_tr_b16 {v(A2 + 4 * T + 2 * e, 2)}, v{64 + T} offset:{e * 1024}'
                      for T in range(8) for e in range(2)])
        self.unpack4(GA, 40); self.unpack4(SB, 42); self.unpack4(CB, 44); self.unpack4(XX, 46)
        for r in range(4):
            a(f'v_add_f32 v{CB + r}, 1.0, v{CB + r}')
        a('s_waitcnt lgkmcnt(0)')
        BE, D0 = 64, 80

        def el():
            for i in range(4):
                a(f'buffer_load_dwordx4 {v(BE + 4 * i, 4)}, v{VE5G}, {s(WS, 4)}, s60 offen offset:{1024 * i} sc1')
            a('s_waitcnt vmcnt(0)')
        self.poll(el, lambda: self.chk_sent([BE + 2 * i for i in range(8)], 12), 'e5')
        self.stamp(8)
        for i in range(4):
            a(f'v_mfma_f32_16x16x32_bf16 {v(D0, 4)}, {v(CA, 4)}, {v(BE + 4 * i, 4)}, {v(D0, 4) if i else 0}')
        a(f'''v_pk_fma_f32 {v(XX, 2)}, {v(GA, 2)}, {v(D0, 2)}, {v(XX, 2)}
v_pk_fma_f32 {v(XX + 2, 2)}, {v(GA + 2, 2)}, {v(D0 + 2, 2)}, {v(XX + 2, 2)}
v_pk_mul_f32 v[84:85], {v(XX, 2)}, {v(XX, 2)}
v_pk_add_f32 v[86:87], {v(XX, 2)}, {v(XX + 2, 2)}
v_pk_fma_f32 v[84:85], {v(XX + 2, 2)}, {v(XX + 2, 2)}, v[84:85]
v_add_f32 v86, v86, v87
v_add_f32 v84, v84, v85
v_permlane16_swap_b32 v86, v84
v_add_f32 v86, v86, v84''')
        self.red16('v_add_f32', (86,))
        a(f'''ds_write_b32 v{VSTW}, v86
s_waitcnt lgkmcnt(0)
s_barrier
ds_read_b128 v[84:87], v{VSTR}
ds_read_b128 v[88:91], v{VSTR} offset:16
s_waitcnt lgkmcnt(1)
v_pk_add_f32 v[84:85], v[84:85], v[86:87]
s_waitcnt lgkmcnt(0)
v_pk_add_f32 v[88:89], v[88:89], v[90:91]
v_add_f32 v84, v84, v85
v_add_f32 v88, v88, v89
v_mul_f32 v84, {f32(1 / 512)}, v84
v_mul_f32 v88, {f32(1 / 512)}, v88
v_fma_f32 v88, -v84, v84, v88
v_max_f32 v88, 0, v88
v_add_f32 v88, {f32(1e-5)}, v88
v_rsq_f32 v88, v88
v_pk_add_f32 {v(XX, 2)}, {v(XX, 2)}, v[84:85] op_sel_hi:[1,0] neg_lo:[0,1] neg_hi:[0,1]
v_pk_add_f32 {v(XX + 2, 2)}, {v(XX + 2, 2)}, v[84:85] op_sel_hi:[1,0] neg_lo:[0,1] neg_hi:[0,1]
v_pk_mul_f32 {v(XX, 2)}, {v(XX, 2)}, {v(CB, 2)}
v_pk_mul_f32 {v(XX + 2, 2)}, {v(XX + 2, 2)}, {v(CB + 2, 2)}
v_pk_fma_f32 {v(XX, 2)}, {v(XX, 2)}, v[88:89], {v(SB, 2)} op_sel_hi:[1,0,1]
v_pk_fma_f32 {v(XX + 2, 2)}, {v(XX + 2, 2)}, v[88:89], {v(SB + 2, 2)} op_sel_hi:[1,0,1]
v_cvt_pk_bf16_f32 v84, v{XX}, v{XX + 1}
v_cvt_pk_bf16_f32 v85, v{XX + 2}, v{XX + 3}
ds_write_b64 v{VHW}, v[84:85]
s_waitcnt lgkmcnt(0)
s_barrier''')
        self.stamp(9)
        a(f's_cmp_ge_u32 s{SW}, 2\ns_cbranch_scc1 Lf_now1')
        BH = 224
        q = LQ(a)
        for kk in range(8):
            q.issue(f'ds_read_b128 {v(BH + 4 * kk, 4)}, v{VHR} offset:{kk * 64}', kk)
        for kk in range(7):
            q.issue(f'ds_read_b128 {v(40 + 4 * kk, 4)}, v{VHR} offset:{(8 + kk) * 64}', 8 + kk)
        for kk in range(16):
            q.wait(kk)
            r = BH + 4 * kk if kk < 8 else 40 + 4 * (kk - 8)
            a(f'v_mfma_f32_16x16x32_bf16 {v(D0, 4)}, {v(A1 + 4 * kk, 4)}, {v(r, 4)}, {v(D0, 4) if kk else 0}')
            if kk == 0:
                q.issue(f'ds_read_b128 {v(68, 4)}, v{VHR} offset:{15 * 64}', 15)
        for r in range(4):
            a(f'v_max_f32 v{D0 + r}, 0, v{D0 + r}')
        a(f'''v_cvt_pk_bf16_f32 v84, v{D0}, v{D0 + 1}
v_cvt_pk_bf16_f32 v85, v{D0 + 2}, v{D0 + 3}
ds_write_b64 v{VFW}, v[84:85]
s_waitcnt lgkmcnt(0)
Lf_now1:''')
        self.execm(0x00030003)
        a('s_barrier')
        for T in range(8):
            a(f'ds_read_b128 {v(BF + 4 * T, 4)}, v{VFR}')
            a('s_lshl_b64 exec, exec, 2' if T < 7 else 's_mov_b64 exec, -1')
        for T in range(8):
            a(f's_waitcnt lgkmcnt({7 - T})')
            a(f'v_mfma_f32_16x16x32_bf16 {v(88, 4)}, {v(A2 + 4 * T, 4)}, {v(BF + 4 * T, 4)}, {v(88, 4) if T else 0}')
        a(f'''v_cvt_pk_bf16_f32 v84, v88, v89
v_cvt_pk_bf16_f32 v85, v90, v91
v_min_u32 v84, -2, v84
buffer_store_dwordx2 v[84:85], v{VE7}, {s(WS, 4)}, 0 offen sc1''')
        self.stamp(10)
        self.end()

        VO, VZ5, VZ7 = 24, 25, 26
        a(f'''Lrole_z:
s_lshl_b32 s61, s{SX}, 1
s_add_u32 s61, s61, s3
v_bfe_u32 v12, v0, 3, 1
v_and_b32 v14, 7, v0
v_lshlrev_b32 v14, 3, v14
s_lshl_b32 s3, s61, 6
v_add_u32 v14, s3, v14
v_lshl_add_u32 v{VO}, v12, 10, v14
v_lshl_add_u32 v{VZ5}, v12, 13, v14
v_lshl_add_u32 v{VZ5}, v{GG}, 11, v{VZ5}
v_mul_u32_u24 v{VZ7}, {14 * 128}, v{GG}
v_lshl_add_u32 v{VZ7}, v{JJ}, 3, v{VZ7}
v_lshlrev_b32 v12, 4, v21
s_movk_i32 s3, 0x3f80
v_lshlrev_b32 v12, v12, s3
v_cmp_eq_u32 vcc, 0, v22
s_mov_b32 s{SO}, {MOD2}
s_mov_b32 s{SO2}, {MOD2 + 6144}
v_cndmask_b32 v{CA}, 0, v12, vcc
v_cndmask_b32 v{CA + 2}, 0, v12, vcc
v_sub_u32 v{CA + 1}, v12, v{CA}
v_sub_u32 v{CA + 3}, v12, v{CA}
s_mov_b32 s60, {E5}
s_mul_i32 s62, s61, 7168
s_add_u32 s62, s62, {E7}
buffer_load_dwordx2 v[46:47], v{VO}, {s(XS, 4)}, 0 offen''')

        def zm():
            a(f'''buffer_load_dwordx2 v[40:41], v{VO}, {s(WS, 4)}, s{SO} offen sc1
buffer_load_dwordx2 v[42:43], v{VO}, {s(WS, 4)}, s{SO2} offen sc1
s_waitcnt vmcnt(0)''')
        self.poll(zm, lambda: self.chk_sent([40, 42], 12))
        self.unpack4(GA, 40); self.unpack4(SB, 42); self.unpack4(XX, 46)

        def z5():
            a(f'''buffer_load_dwordx2 v[64:65], v{VZ5}, {s(WS, 4)}, s60 offen sc1
buffer_load_dwordx2 v[66:67], v{VZ5}, {s(WS, 4)}, s60 offen offset:1024 sc1
s_waitcnt vmcnt(0)''')
        self.poll(z5, lambda: self.chk_sent([64, 66], 12), 'e5')
        self.stamp(8)
        a(f'''v_mfma_f32_16x16x32_bf16 {v(D0, 4)}, {v(CA, 4)}, v[64:67], 0
s_cmp_eq_u32 s61, 0
s_cselect_b32 s3, 0, {OOB}
v_mov_b32 v12, s3
v_mov_b32 v13, s{TAG}
s_mov_b64 exec, 1
buffer_store_dword v13, v12, {s(WS, 4)}, 0 offen sc1
s_mov_b64 exec, -1
v_pk_fma_f32 {v(XX, 2)}, {v(GA, 2)}, {v(D0, 2)}, {v(XX, 2)}
v_pk_fma_f32 {v(XX + 2, 2)}, {v(GA + 2, 2)}, {v(D0 + 2, 2)}, {v(XX + 2, 2)}''')
        BZ = 96

        def z7():
            for i in range(14):
                a(f'buffer_load_dwordx2 {v(BZ + 2 * i, 2)}, v{VZ7}, {s(WS, 4)}, s62 offen offset:{128 * i} sc1')
            a('s_waitcnt vmcnt(0)')
        self.poll(z7, lambda: self.chk_sent([BZ + 2 * i for i in range(14)], 12), 'e7')
        self.stamp(9)
        for u in range(7):
            a(f'v_mfma_f32_16x16x32_bf16 {v(D0, 4)}, {v(CA, 4)}, {v(BZ + 4 * u, 4)}, {v(D0, 4) if u else 0}')
        a(f'''v_pk_fma_f32 {v(XX, 2)}, {v(SB, 2)}, {v(D0, 2)}, {v(XX, 2)}
v_pk_fma_f32 {v(XX + 2, 2)}, {v(SB + 2, 2)}, {v(D0 + 2, 2)}, {v(XX + 2, 2)}
v_cvt_pk_bf16_f32 v84, v{XX}, v{XX + 1}
v_cvt_pk_bf16_f32 v85, v{XX + 2}, v{XX + 3}
s_mov_b64 exec, 0xffff
buffer_store_dwordx2 v[84:85], v{VO}, {s(OUT, 4)}, 0 offen''')
        self.stamp(10)
        self.end()

    def probe_out(self):
        a = self.a
        wg, wave, idx, k = self.probe
        a(f'''Lstamps:
s_waitcnt vmcnt(0) lgkmcnt(0)
s_cmp_eq_u32 s2, {wg}
s_cbranch_scc0 Lpend
s_cmp_eq_u32 s{SW}, {wave}
s_cbranch_scc0 Lpend
s_sub_u32 s3, s{64 + 2 * idx}, s64
s_min_u32 s3, s3, 8000
s_mul_i32 s3, s3, {k}
s_add_u32 s3, s3, 6000
Lpspin:
s_memrealtime s[66:67]
s_waitcnt lgkmcnt(0)
s_sub_u32 s66, s66, s64
s_cmp_lt_u32 s66, s3
s_cbranch_scc1 Lpspin
Lpend:
s_endpgm''')

    def stamps_out(self):
        a = self.a
        if self.probe is not None:
            return self.probe_out()
        a(f'''Lstamps:
s_waitcnt vmcnt(0)
s_memrealtime {s(64 + 2 * 12, 2)}
s_mov_b64 exec, 1
s_lshl_b32 s3, s2, 2
s_add_u32 s3, s3, s{SW}
s_lshl_b32 s3, s3, 6
s_add_u32 s3, s3, {STAMP}
v_mov_b32 v1, s3
s_waitcnt lgkmcnt(0)''')
        for i in range(16):
            a(f'v_mov_b32 v2, s{64 + 2 * i}\nbuffer_store_dword v2, v1, {s(WS, 4)}, 0 offen offset:{4 * i}')
        a('s_endpgm')

    def body(self):
        if self.stamps:
            for i in range(16):
                self.a(f's_mov_b32 s{64 + 2 * i}, 0')
        self.entry()
        self.role_t()
        self.role_a()
        if self.stamps:
            self.stamps_out()
        return self.a.text()


def make(**kw):
    ref = open(f'cdna_kernels/{NAME}.s.ref').read().split('\n')
    i0 = next(i for i, l in enumerate(ref) if l.startswith(KN + ':'))
    i1 = next(i for i, l in enumerate(ref) if l.startswith('s_endpgm'))
    head = [('; @launch grid=(256,1,1) block=(256,1,1) lds=163840' if l.startswith('; @launch') else l)
            for l in ref[:i0 + 1]]
    return '\n'.join(head) + '\n' + G(**kw).body() + '\n' + '\n'.join(ref[i1 + 1:])


if __name__ == '__main__':
    open('k.s', 'w').write(make())
    open('k_st.s', 'w').write(make(stamps=True))
```

```python
import sys, math
sys.path.insert(0, 'work')
import numpy as np
from asmlib import v, s
import gen
from gen import G, LQ, f32, NAME, KN, PHI, SPIN, OOB, DPPM, X1, X2, WS, TAG, SW, SPN

FLAG, E1, MOD2, E5, E3, E2L, GATE = 0x1000, 0x2000, 0xA000, 0xC000, 0x10000, 0x20000, 0x40000
H2L, E7, E2G, H2G, H1 = 0x50000, 0x60000, 0x80000, 0xA0000, 0x100000
ID, ST = 42, 43
_j = np.arange(256) >> 3
GROUPS = (('T<8', (_j >= 16) & (_j < 24)), ('T>=8', _j >= 24), ('Awo', _j < 8), ('Affn', (_j >= 8) & (_j < 15)))
M16, M16h, M32 = 'v_mfma_f32_16x16x32_bf16', 'v_mfma_f32_16x16x16_bf16', 'v_mfma_f32_32x32x16_bf16'
W = s(WS, 4)


def ag(a, n):
    return f'a[{a}:{a + n - 1}]'


class VQ:
    def __init__(self, a):
        self.a = a; self.q = []

    def __call__(self, text, tag=None):
        self.a(text); self.q.append(tag)

    def wait(self, tag):
        if tag in self.q:
            i = len(self.q) - 1 - self.q[::-1].index(tag)
            self.a(f's_waitcnt vmcnt({len(self.q) - 1 - i})')
            self.q = self.q[i + 1:]


class G2(G):
    def vr(self, n=1):
        al = 1 if n == 1 else 2
        self.nv = (self.nv + al - 1) // al * al
        r = self.nv; self.nv += n
        assert self.nv <= 256
        return r

    def sr(self):
        r = self.sfree.pop(0)
        return r

    def fld(self, lo, n):
        if (lo, n) not in self.f:
            r = self.f[(lo, n)] = self.vr()
            self.a(f'v_bfe_u32 v{r}, v0, {lo}, {n}')
        return self.f[(lo, n)]

    def va(self, terms, add=0, d=None):
        a = self.a
        d = self.vr() if d is None else d
        acc = None
        if isinstance(add, str):
            acc = add
        elif add:
            a(f's_mov_b32 s3, {add}'); acc = 's3'
        terms = sorted(terms, key=lambda t: (not (len(t) == 2 and t[0] == d), t[-1] & (t[-1] - 1) != 0))
        for t in terms:
            r = self.fld(*t[:2]) if len(t) == 3 else t[0]
            m = t[-1]
            if m & (m - 1) == 0:
                sh = m.bit_length() - 1
                a(f'v_lshl_add_u32 v{d}, v{r}, {sh}, {acc}' if acc else f'v_lshlrev_b32 v{d}, {sh}, v{r}')
            elif acc:
                assert acc[0] == 'v'
                a(f's_mov_b32 s3, {m}\nv_mad_u32_u24 v{d}, v{r}, s3, {acc}')
            else:
                a(f'v_mul_u32_u24 v{d}, {m}, v{r}')
            acc = f'v{d}'
        return d

    def sa(self, terms, add=0, d=None):
        a = self.a
        d = self.sr() if d is None else d
        dn = d if isinstance(d, str) else f's{d}'
        acc = add if add else None
        for lo, n, m in terms:
            a(f's_bfe_u32 s3, s{ID}, {lo | n << 16:#x}')
            t = 's3' if acc else dn
            a(f's_mul_i32 {t}, s3, {m}' if m & (m - 1) else f's_lshl_b32 {t}, s3, {m.bit_length() - 1}')
            if acc:
                a(f's_add_u32 {dn}, s3, {acc}')
            acc = dn
        return d

    def sel(self, n, val, key, base=0):
        a = self.a
        d, t = self.vr(n), self.va([(0, 1, 16)])
        a(f's_mov_b32 s3, {val:#x}\nv_lshlrev_b32 v{t}, v{t}, s3')
        for i in range(n):
            a(f'v_cmp_eq_u32 vcc, {base + i}, v{key}\nv_cndmask_b32 v{d + i}, 0, v{t}, vcc')
        return d

    def poll2(self, loads, check, pre=None, boxes=None, slow=None):
        a = self.a
        L, D, C = a.label('poll'), a.label('done'), a.label('chk')
        a(f's_mov_b32 s{SPN}, {SPIN - 1}')
        if pre:
            loads(boxes[0] if boxes else None); pre()
            a(f's_branch {C}')
        a(f'{L}:')
        if boxes:
            a(f's_and_b32 s3, s{SPN}, 31\ns_cselect_b32 s3, s{boxes[0]}, s{boxes[1]}')
            if slow:
                F = a.label('fast')
                a(f's_cbranch_scc1 {F}'); slow(); a(f'{F}:')
        loads(3)
        a(f'{C}:\ns_waitcnt vmcnt(0)')
        check()
        a(f's_cbranch_vccz {D}\ns_sub_u32 s{SPN}, s{SPN}, 1\ns_cbranch_scc0 {L}\n{D}:')

    def pollm(self, items, t, tag=False, pre=None, first=' sc1'):
        a = self.a
        D, C = a.label('done'), a.label('chk')
        a(f's_mov_b32 s{SPN}, {SPIN - 1}')
        for ld, _ in items:
            a(ld + first)
        if pre:
            pre()
        a(f'{C}:\ns_waitcnt vmcnt(0)')
        (self.chk_tag if tag else self.chk_sent)([r for _, r in items], t)
        a(f's_cbranch_vccz {D}')
        for ld, r in items:
            if len(items) > 1:
                a(f'v_cmp_ne_u32 vcc, s{TAG}, v{r}' if tag else f'v_cmp_eq_u32 vcc, -1, v{r}')
            a(f's_mov_b64 exec, vcc\n{ld} sc1\ns_mov_b64 exec, -1')
        a(f's_sub_u32 s{SPN}, s{SPN}, 1\ns_cbranch_scc0 {C}\n{D}:')

    def red64(self, op, r, t):
        self.red16(op, (r,))
        for p in ('16', '32'):
            self.a(f'v_mov_b32 v{t}, v{r}\nv_permlane{p}_swap_b32 v{r}, v{t}\n{op} v{r}, v{r}, v{t}')

    def cvt(self, d, src, n):
        for i in range(n):
            self.a(f'v_cvt_pk_bf16_f32 v{d + i}, v{src + 2 * i}, v{src + 2 * i + 1}')

    def entry(self):
        a = self.a
        a('s_cmp_lt_u32 s2, 0x100\ns_cbranch_scc1 Lrun\ns_endpgm\nLrun:')
        self.stamp(0)
        if self.o.get('swap'):
            a('s_xor_b32 s2, s2, 0x80')
        self.pend = []
        self.srd(WS, 104, 0x700000 if self.stamps else gen.WS_BYTES)
        a(f'v_lshrrev_b32 v1, 6, v0\ns_bfe_u32 s{ST}, s2, 0x40003\nv_readfirstlane_b32 s{SW}, v1')
        a('\n'.join(self.pend))
        a(f's_lshl_b32 s3, s{SW}, 8\ns_or_b32 s{ID}, s3, s2\ns_bitcmp0_b32 s2, 7\ns_cbranch_scc1 Lrole_a')

    def begin(self):
        self.nv = 2; self.f = {}
        self.sfree = list(range(45, 64)) + list(range(96, 102))

    def dma256(self, vq, srd, v0, v1, so, step, lds, tag):
        a = self.a
        self.sa([(8, 2, 2048)], lds, 'm0')
        for i in range(4):
            vq(f'buffer_load_dwordx4 v{v0}, {s(srd, 4)}, s{so} offen nt lds', tag)
            vq(f'buffer_load_dwordx4 v{v1}, {s(srd, 4)}, s{so} offen offset:1024 nt lds', tag)
            if i < 3:
                a(f's_add_u32 m0, m0, 8192\ns_add_u32 s{so}, s{so}, {step}')

    def role_t(self):
        a, va, sa, vr = self.a, self.va, self.sa, self.vr
        self.begin()
        XS, CS, WM, WQ, WUK, WUV, OUT = 8, 12, 16, 20, 24, 28, 36
        LWQ, LUK, LMOD, LUV, LSIL, LHB, LCC = 0, 32768, 65536, 98304, 131072, 133376, 135424
        self.pend = []
        self.srd(CS, 72, 2048); self.srd(WM, 80, 3145728); self.srd(XS, 0, 2048)
        self.srd(WQ, 16, 4194304); self.srd(WUK, 24, 4194304); self.srd(WUV, 32, 4194304); self.srd(OUT, 88, 2048)
        a('\n'.join(self.pend))
        vq = VQ(a)
        VC = va([(0, 1, 1024), (1, 1, 64), (4, 2, 16)])
        VM = va([(0, 3, 16), (3, 3, 6144)])
        SO = sa([(3, 3, 64 * 6144), (8, 2, 16 * 6144), (0, 3, 128)])
        S1 = sa([(3, 3, 128)])
        sa([(8, 2, 4096)], LMOD, 'm0')
        RC, RX, RXO, NEG = vr(4), vr(8), vr(2), vr(4)
        V16 = va([(0, 6, 16)])
        a(f'''s_waitcnt lgkmcnt(0)
s_load_dword s{TAG}, {s(WS, 2)}, 0
s_cmp_ge_u32 s{ST}, 8
s_cbranch_scc1 Lt_nomod1a''')
        vq(f'buffer_load_dwordx4 {v(RC, 4)}, v{VC}, {s(CS, 4)}, s{S1} offen', 'c')
        for i in range(4):
            if i == 2:
                a(f's_add_u32 s{SO}, s{SO}, {8 * 6144 - 2048}')
            vq(f'buffer_load_dwordx4 v{VM}, {s(WM, 4)}, s{SO} offen offset:{1024 * i} nt lds')
        keep = dict(self.f)
        VX = va([(0, 6, 32)])
        VXO = va([(0, 1, 1024), (4, 2, 8), (6, 2, 32)])
        sa([(0, 3, 128)], 0, S1)
        vq(f'buffer_load_dwordx4 {v(RX, 4)}, v{VX}, {s(XS, 4)}, 0 offen')
        vq(f'buffer_load_dwordx4 {v(RX + 4, 4)}, v{VX}, {s(XS, 4)}, 0 offen offset:16')
        vq(f'buffer_load_dwordx2 {v(RXO, 2)}, v{VXO}, {s(XS, 4)}, s{S1} offen', 'x')
        self.f = keep
        a('Lt_nomod1a:')
        SH2 = sa([(0, 3, 8192), (5, 2, 2048), (9, 1, 1024), (3, 2, 256), (8, 1, 128)], H2L)
        SH2G, SM2, SE2R = self.sr(), sa([(0, 3, 1024), (3, 3, 128)], MOD2), sa([(0, 3, 16384), (5, 2, 4096), (8, 2, 1024)], E2L)
        sa([(0, 7, 128)], E5, SO)
        sa([(2, 1, 32768), (0, 2, 8192), (3, 3, 1024), (8, 2, 256)], E3, S1)
        a(f's_xor_b32 s{S1}, s{S1}, 32768')
        a(f'''v_mov_b64 {v(NEG, 2)}, -1
v_mov_b64 {v(NEG + 2, 2)}, -1
s_add_u32 s{SH2G}, s{SH2}, {H2G - H2L}
s_cmp_ge_u32 s{ST}, 8
s_cselect_b32 s{S1}, {OOB}, s{S1}
s_cselect_b32 s{SM2}, s{SM2}, {OOB}
s_cmp_eq_u32 s{SW}, 1
s_cselect_b32 s3, s{SM2}, {OOB}
s_cmp_eq_u32 s{SW}, 0
s_cselect_b32 s{SO}, s{SO}, s3
s_mov_b64 exec, 0xffff''')
        vq(f'buffer_store_dwordx4 {v(NEG, 4)}, v{V16}, {W}, s{S1} offen sc1')
        a('s_mov_b64 exec, 0xff')
        for r in (SH2, SH2G, SO):
            vq(f'buffer_store_dwordx4 {v(NEG, 4)}, v{V16}, {W}, s{r} offen sc1', 'clr')
        a('s_mov_b64 exec, -1')
        RG = vr(8)
        vq(f'buffer_load_dwordx4 {v(RG, 4)}, v{V16}, {W}, s{SE2R} offen sc1')
        SWZ = va([(4, 2, 4), (6, 2, 1)])
        a(f'v_xor_b32 v{SWZ}, v{SWZ}, v{self.fld(0, 4)}')
        VW0 = va([(SWZ, 16), (4, 2, 8192)])
        VW1 = vr()
        a(f'v_add_u32 v{VW1}, {32768 - 1024}, v{VW0}')
        wterms = [(3, 2, 1 << 20), (0, 3, 1024), (5, 2, 256), (8, 2, 65536)]
        sa(wterms, 0, SO)
        a(f's_mov_b32 s{S1}, s{SO}')
        self.dma256(vq, WQ, VW0, VW1, SO, 262144, LWQ, 'wq')
        VA1 = va([(4, 2, 2048), (2, 2, 128), (6, 2, 32), (0, 2, 8)], LMOD)
        VE1 = va([(4, 2, 32), (0, 1, 16)])
        SE1W = sa([(1, 2, 8192), (0, 1, 4096), (9, 1, 2048), (3, 3, 256), (8, 1, 128)], E1)
        SE1R = sa([(3, 2, 8192), (8, 2, 2048)], E1)
        t0, t1 = va([(6, 2, 4), (0, 2, 1)]), va([(2, 2, 4), (4, 2, 1)])
        a(f'v_xor_b32 v{t0}, v{t0}, v{t1}')
        VTR = va([(4, 2, 2048), (2, 2, 256), (t0, 16)])
        va([(0, 2, 4), (2, 2, 1)], d=t0)
        a(f'v_xor_b32 v{t0}, v{t0}, v{self.fld(4, 2)}')
        VUK = vr(4)
        va([(6, 1, 16384), (2, 2, 2048), (0, 2, 256), (t0, 16)], LUK, VUK)
        for k in range(1, 4):
            a(f'v_xor_b32 v{VUK + k}, {64 * k}, v{VUK}')
        VHW = va([(6, 2, 64), (1, 3, 8), (0, 1, 288)], LHB)
        VHR = va([(4, 2, 16), (0, 1, 288)], LHB)
        VE2 = va([(4, 2, 64), (0, 2, 16)])
        SE2W = sa([(3, 2, 256)], f's{SE2R}')
        SE2WG, SE2RG = self.sr(), self.sr()
        a(f's_add_u32 s{SE2WG}, s{SE2W}, {E2G - E2L}\ns_add_u32 s{SE2RG}, s{SE2R}, {E2G - E2L}')
        va([(6, 1, 8), (1, 1, 4), (4, 2, 1)], d=t0)
        SE3 = sa([(0, 1, 8), (5, 2, 2), (1, 1, 1)])
        a(f'v_xor_b32 v{t0}, s{SE3}, v{t0}')
        VE3 = va([(0, 1, 32768), (t0, 16)])
        sa([(3, 2, 8192), (0, 3, 1024), (5, 2, 256)], E3, SE3)
        SFL = sa([(0, 3, 128), (3, 2, 4)], FLAG)
        a(f's_and_b32 s3, s{ID}, 0x360\ns_cmp_eq_u32 s3, 0x300\ns_cselect_b32 s{SFL}, s{SFL}, {OOB}')
        SEL4 = self.sel(2, 0x3f80, self.fld(1, 1))
        PK, D0, U = vr(4), vr(16), vr(16)
        MC = 34
        a(f's_mov_b32 s{MC}, 0xcccccccc\ns_mov_b32 s{MC + 1}, 0xcccccccc')
        tagset = f's_waitcnt lgkmcnt(0)\ns_add_u32 s{TAG}, s{TAG}, {PHI:#x}\nv_mov_b32 v{PK + 2}, s{TAG}\nv_mov_b32 v{PK + 3}, s{TAG}'
        self.stamp(13)
        a(f's_cmp_ge_u32 s{ST}, 8\ns_cbranch_scc1 Lt_nomod1b')
        AQ = vr(32); BF = vr(16); AUK = vr(64)
        vq.wait('c')
        self.unpack4(U, RC); self.unpack4(U + 4, RC + 2)
        for op in (f'v_mul_f32 v%d, {f32(-math.log2(math.e))}, v%d', 'v_exp_f32 v%d, v%d', 'v_add_f32 v%d, 1.0, v%d', 'v_rcp_f32 v%d, v%d'):
            for i in range(8):
                a(op % (U + 8 + i, U + i + (0 if 'mul' in op else 8)))
        for i in range(0, 8, 2):
            a(f'v_pk_mul_f32 {v(U + i, 2)}, {v(U + i, 2)}, {v(U + 8 + i, 2)}')
        self.cvt(U + 8, U, 4)
        for h, qp in enumerate(('[0,1,0,1]', '[2,3,2,3]')):
            for i in range(4):
                a(f'v_mov_b32_dpp v{BF + 4 * h + i}, v{U + 8 + i} quad_perm:{qp} {DPPM}')
        a(f's_cmp_eq_u32 s{ST}, 0\ns_cselect_b32 s3, 1.0, 0')
        for r in range(4):
            a(f'v_mov_b32 v{D0 + 4 + r}, s3')
        a(tagset)
        vq.wait('x')
        SUM, SQ, AM = U + 4, U + 6, U + 8
        for i in range(4):
            self.unpack4(U, RX + 2 * i)
            for k in (0, 2):
                if i == 0 and k == 0:
                    a(f'v_pk_mul_f32 {v(SQ, 2)}, {v(U, 2)}, {v(U, 2)}')
                else:
                    a(f'v_pk_add_f32 {v(SUM, 2)}, {v(U if i == 0 else SUM, 2)}, {v(U + k, 2)}')
                    a(f'v_pk_fma_f32 {v(SQ, 2)}, {v(U + k, 2)}, {v(U + k, 2)}, {v(SQ, 2)}')
        a(f'v_add_f32 v{SUM}, v{SUM}, v{SUM + 1}\nv_add_f32 v{SQ}, v{SQ}, v{SQ + 1}')
        self.red16('v_add_f32', (SUM, SQ))
        a(f'''v_mov_b32 v{U}, v{SUM}
v_mov_b32 v{U + 1}, v{SQ}
v_permlane16_swap_b32 v{U}, v{SUM}
v_permlane16_swap_b32 v{U + 1}, v{SQ}
v_add_f32 v{SUM}, v{SUM}, v{U}
v_add_f32 v{SQ}, v{SQ}, v{U + 1}
v_mul_f32 v{SUM}, {f32(1 / 512)}, v{SUM}
v_mul_f32 v{SQ}, {f32(1 / 512)}, v{SQ}
v_fma_f32 v{SQ}, -v{SUM}, v{SUM}, v{SQ}
v_max_f32 v{SQ}, 0, v{SQ}
v_add_f32 v{SQ}, {f32(1e-5)}, v{SQ}
v_rsq_f32 v{SQ}, v{SQ}
v_mov_b32 v{U}, v{SUM}
v_cmp_eq_u32 vcc, 1, v{self.fld(0, 1)}
v_mov_b32 v{U + 1}, v{SQ}
v_permlane32_swap_b32 v{SUM}, v{U}
v_permlane32_swap_b32 v{SQ}, v{U + 1}
v_cndmask_b32 v{SUM}, v{SUM}, v{U}, vcc
v_cndmask_b32 v{SQ}, v{SQ}, v{U + 1}, vcc''')
        self.unpack4(AM, RXO)
        for r in range(4):
            a(f'v_sub_f32 v{AM + r}, v{AM + r}, v{SUM}')
        for r in range(4):
            a(f'v_mul_f32 v{AM + r}, v{AM + r}, v{SQ}')
        self.stamp(14)
        vq.wait('clr')
        a('s_barrier')
        self.stamp(15)
        q = LQ(a)
        for i in range(4):
            for e in range(2):
                q.issue(f'ds_read_b64_tr_b16 {v(AQ + 4 * i + 2 * e, 2)}, v{VA1} offset:{(i >> 1) * 8192 + (i & 1) * 1024 + e * 512}', i)
        for i in range(4):
            q.wait(i)
            d = v(D0 + 4 * (i & 1), 4)
            a(f'{M16} {d}, {v(AQ + 4 * i, 4)}, {v(BF + 4 * (i >> 1), 4)}, {d if i else 0}')
        self.execm(0x00030003)
        for r in (0, 2):
            a(f'v_pk_fma_f32 {v(D0 + r, 2)}, {v(AM + r, 2)}, {v(D0 + 4 + r, 2)}, {v(D0 + r, 2)}')
        self.cvt(PK, D0, 2)
        a(f'buffer_store_dwordx4 {v(PK, 4)}, v{VE1}, {W}, s{SE1W} offen sc1\ns_mov_b64 exec, -1')
        self.stamp(1)
        a(f's_branch Lt_join\nLt_nomod1b:\n{tagset}\nbuffer_load_dword v{RG}, v{V16}, {W}, s{SE2R} offen sc1\nLt_join:')
        vq.q.append(None)
        self.dma256(vq, WUK, VW0, VW1, S1, 262144, LUK, 'wuk')

        def l1(_):
            for i in range(2):
                vq(f'buffer_load_dwordx4 {v(RG + 4 * i, 4)}, v{V16}, {W}, s{SE1R} offen offset:{1024 * i} sc1')

        def trpre(A, base):
            self.preread([f'ds_read_b64_tr_b16 {v(A + 16 * T + 4 * kk + 2 * e, 2)}, v{base} offset:{kk * 8192 + e * 1024 + T * 8}'
                          for kk in range(4) for T in range(2) for e in range(2)])

        def p1():
            vq.wait('wq')
            a('s_barrier')
            self.stamp(2)
            trpre(AQ, VTR)
        self.poll2(l1, lambda: self.chk_tag([RG + 2, RG + 6], t0), p1)
        self.stamp(3)

        def flag(pos):
            if self.o.get('flagpos', 2) == pos:
                a(f's_mov_b64 exec, 1\nbuffer_store_dword v{PK + 2}, v{V16}, {W}, s{SFL} offen\ns_mov_b64 exec, -1')

        def exch(off):
            self.cvt(U, D0, 2)
            a(f'ds_write_b64 v{VHW}, {v(U, 2)} offset:{off}\ns_waitcnt lgkmcnt(0)\ns_barrier')

        def mm(A, nt, rd, off):
            for kk in range(4):
                a(f'ds_read_b128 {v(BF + 4 * kk, 4)}, v{rd} offset:{off + kk * 64}')
            for kk in range(4):
                a(f's_waitcnt lgkmcnt({3 - kk})')
                for T in range(nt):
                    d = v(D0 + 4 * T, 4)
                    a(f'{M16} {d}, {v(A + 16 * T + 4 * kk, 4)}, {v(BF + 4 * kk, 4)}, {d if kk else 0}')
        a(f'{M16h} {v(D0, 4)}, {v(SEL4, 2)}, {v(RG, 2)}, 0\n{M16h} {v(D0, 4)}, {v(SEL4, 2)}, {v(RG + 4, 2)}, {v(D0, 4)}')
        exch(0)
        flag(0)
        mm(AQ, 2, VHR, 0)
        self.execm(0x000f000f)
        self.cvt(U, D0, 4)
        for i in range(2):
            a(f'v_cndmask_b32 v{PK + i}, v{U + i}, v{U + 2 + i}, {s(MC, 2)}')
        a(f'''buffer_store_dwordx4 {v(PK, 4)}, v{VE2}, {W}, s{SE2W} offen
s_mov_b64 exec, -1''')
        flag(1)

        def e2g():
            self.execm(0x000f000f)
            a(f'buffer_store_dwordx4 {v(PK, 4)}, v{VE2}, {W}, s{SE2WG} offen sc1\ns_mov_b64 exec, -1')

        def p2():
            a(f's_cmp_ge_u32 s{SW}, 2\ns_cbranch_scc1 Lt_nouk')
            self.preread([f'ds_read_b128 {v(AUK + 16 * T + 4 * kk, 4)}, v{VUK + kk} offset:{(T >> 1) * 8192 + (T & 1) * 1024}'
                          for kk in range(4) for T in range(4)])
            a('Lt_nouk:')
        self.poll2(lambda so: a(f'buffer_load_dwordx4 {v(RG, 4)}, v{V16}, {W}, s{so} offen sc1'),
                   lambda: self.chk_tag([RG + 2], t0), p2, (SE2R, SE2RG), e2g)
        self.stamp(4)
        flag(2)
        a(f'{M16h} {v(D0, 4)}, {v(SEL4, 2)}, {v(RG, 2)}, 0')
        exch(1024)
        a(f's_cmp_ge_u32 s{SW}, 2\ns_cbranch_scc1 Lt_noe3')
        mm(AUK, 4, VHR, 1024)
        self.execm(0x000f000f)
        self.cvt(U, D0, 8)
        for i in range(4):
            a(f'v_cndmask_b32 v{U + 8 + i}, v{U + i}, v{U + 4 + i}, {s(MC, 2)}')
        a(f'''v_min_u32 v{U + 8}, -2, v{U + 8}
buffer_store_dwordx4 {v(U + 8, 4)}, v{VE3}, {W}, s{SE3} offen sc1
s_mov_b64 exec, -1
Lt_noe3:''')
        self.stamp(5)
        va([(SWZ, 16), (5, 1, 1 << 20), (4, 1, 131072)], d=VW0)
        a(f'v_add_u32 v{VW1}, {(1 << 21) - 1024}, v{VW0}')
        sa([(3, 2, 262144), (8, 2, 8192), (0, 3, 1024), (5, 2, 256)], 0, SO)
        va([(5, 1, 2)], d=t0)
        a(f'v_xor_b32 v{t0}, v{t0}, v{self.fld(0, 2)}')
        va([(t0, 16), (2, 4, 6144)], d=VM)
        va([(0, 8, 8)], d=VC)
        VSILW = va([(VC, 1), (7, 1, 32)], LSIL)
        a('s_barrier')
        flag(3)
        e2g()
        a(f's_mov_b64 exec, 1\nbuffer_store_dword v{PK + 2}, v{V16}, {W}, s{SFL} offen offset:2048 sc1\ns_mov_b64 exec, -1')
        vq = VQ(a)
        self.dma256(vq, WUV, VW0, VW1, SO, 32768, LUV, 'wuv')
        a(f's_cmp_lt_u32 s{ST}, 8\ns_cbranch_scc1 Lt_nomod2a\nbuffer_load_dwordx2 {v(RC, 2)}, v{VC}, {s(CS, 4)}, 0 offen')
        sa([(8, 2, 128 * 6144), (0, 3, 512), (3, 3, 64)], 2048, SO)
        sa([(8, 2, 8192)], LMOD, 'm0')
        self.dma(WM, [(VM, 0)], 8, 1024, 16 * 6144, SO)
        a('s_waitcnt vmcnt(8)')
        self.silu(RC, U, VSILW)
        a('Lt_nomod2a:')
        VSILR = va([(4, 2, 16), (0, 1, 1056)], LSIL)
        a(f'v_xor_b32 v{t0}, v{self.fld(4, 1)}, v{self.fld(6, 1)}')
        VA64 = va([(4, 2, 512), (2, 2, 64), (t0, 32), (0, 2, 8)], LMOD)
        VM2 = va([(0, 1, 64), (6, 1, 32), (4, 2, 8)])
        a(f'v_xor_b32 v{t0}, v{self.fld(3, 1)}, v{self.fld(6, 1)}')
        VGT = va([(7, 1, 32768), (t0, 16384), (0, 3, 2048), (4, 2, 512)])
        SGT = sa([(0, 3, 64), (5, 2, 16)], GATE, SE1W)
        SH1 = sa([(0, 3, 16 * 32768), (3, 4, 32768), (8, 2, 8192)], H1, SE1R)
        SH1b = SE2W
        a(f's_add_u32 s{SH1b}, s{SH1}, 4096\nv_add_u32 v{VTR}, {LUV}, v{VTR}')
        VCW = va([(0, 4, 16), (4, 1, 8), (6, 2, 288)], LCC)
        VCR = va([(4, 2, 16), (0, 2, 288)], LCC)
        VH2 = va([(1, 1, 64), (4, 2, 16)])
        MSK = self.sel(4, 0xffff, self.fld(1, 2))
        a('s_waitcnt vmcnt(0) lgkmcnt(0)\ns_barrier')
        self.stamp(6)
        a(f's_and_b32 s3, s{ID}, 0x240\ns_cmp_lg_u32 s3, 0x40\ns_cbranch_scc1 Lt_nomod2b')
        self.gemv64(16, VA64, VSILR, D0, AUK, AUK + 20, '0')
        self.execm(0x00030003)
        self.cvt(U, D0, 2)
        a(f'v_min_u32 v{U}, -2, v{U}\nbuffer_store_dwordx2 {v(U, 2)}, v{VM2}, {W}, s{SM2} offen sc1\ns_mov_b64 exec, -1\nLt_nomod2b:')
        trpre(AQ, VTR)
        self.pollm([(f'buffer_load_dwordx4 {v(RG, 4)}, v{VGT}, {W}, s{SGT} offen', RG + 2)], t0, True)
        self.stamp(7)
        BH, AR = AUK, AUK + 32

        def hl(_):
            for n in range(8):
                a(f'buffer_load_dwordx4 {v(BH + 4 * n, 4)}, v{V16}, {W}, s{(SH1, SH1b)[n >> 2]} offen offset:{(n & 3) * 1024} sc1')

        def alpha():
            a(f'v_mov_b32 v{U}, v{RG}')
            self.red64('v_max_f32', U, U + 1)
            a(f'v_sub_f32 v{RG}, v{RG}, v{U}\nv_exp_f32 v{RG}, v{RG}\nv_mul_f32 v{U}, v{RG}, v{RG + 1}')
            self.red64('v_add_f32', U, U + 1)
            a(f'v_rcp_f32 v{U}, v{U}\nv_mul_f32 v{RG}, v{RG}, v{U}\nv_cvt_pk_bf16_f32 v{U}, v{RG}, v{RG}')
            for n in range(8):
                for d in range(4):
                    a(f'v_and_b32_dpp v{AR + 4 * n + d}, v{U}, v{MSK + d} row_newbcast:{n} {DPPM}')
        self.pollm([(f'buffer_load_dwordx4 {v(BH + 4 * n, 4)}, v{V16}, {W}, s{(SH1, SH1b)[n >> 2]} offen offset:{(n & 3) * 1024}', BH + 4 * n)
                    for n in range(8)], t0, False, alpha)
        self.stamp(8)
        for n in range(8):
            a(f'{M16} {v(D0, 4)}, {v(AR + 4 * n, 4)}, {v(BH + 4 * n, 4)}, {v(D0, 4) if n else 0}')
        self.cvt(U, D0, 2)
        a(f'ds_write_b64 v{VCW}, {v(U, 2)}\ns_waitcnt lgkmcnt(0)\ns_barrier')
        mm(AQ, 2, VCR, 0)
        for r in range(8):
            a(f'v_add_f32_dpp v{D0 + r}, v{D0 + r}, v{D0 + r} {X1} {DPPM}')
        self.execm(0x00050005)
        self.cvt(U, D0, 4)
        a(f'''v_min_u32 v{U}, -2, v{U}
buffer_store_dwordx4 {v(U, 4)}, v{VH2}, {W}, s{SH2} offen
buffer_store_dwordx4 {v(U, 4)}, v{VH2}, {W}, s{SH2G} offen sc1
s_mov_b64 exec, -1''')
        self.stamp(9)
        a(f's_and_b32 s3, s{ID}, 0x370\ns_cmp_eq_u32 s3, 0x30\ns_cbranch_scc1 Lrole_z')
        self.end()
        a('Lrole_z:')
        VO = va([(4, 1, 1024), (0, 3, 8)], d=VW0)
        VZM = va([(4, 1, 64), (0, 3, 8)], d=VW1)
        VZ5 = va([(3, 3, 2048), (0, 3, 16)], d=VM)
        SOo = sa([(0, 3, 128), (3, 1, 64)], 0, SO)
        SZM = sa([(0, 3, 256), (3, 1, 128)], MOD2, S1)
        SZ7 = sa([(0, 3, 14336), (3, 1, 7168)], E7, SE1W)
        a(f's_add_u32 s{SE1R}, s{SZM}, 6144\ns_add_u32 s{SE2W}, s{SZM}, {E5 - MOD2}\ns_add_u32 s{SE2R}, s{SZ7}, 4096')
        for d in range(4):
            a(f'v_and_b32 v{MSK + d}, 0x3f803f80, v{MSK + d}')
        a(f'buffer_load_dwordx2 {v(RG + 4, 2)}, v{VO}, {s(XS, 4)}, s{SOo} offen')
        self.poll2(lambda _: a(f'buffer_load_dwordx2 {v(RG, 2)}, v{VZM}, {W}, s{SZM} offen sc1\nbuffer_load_dwordx2 {v(RG + 2, 2)}, v{VZM}, {W}, s{SE1R} offen sc1'),
                   lambda: self.chk_sent([RG, RG + 2], t0))
        GA, GB, XX = U, U + 4, U + 8
        self.unpack4(GA, RG); self.unpack4(GB, RG + 2); self.unpack4(XX, RG + 4)

        def fma(g):
            for r in range(4):
                a(f'v_add_f32_dpp v{D0 + r}, v{D0 + r}, v{D0 + r} row_ror:8 {DPPM}')
            for r in (0, 2):
                a(f'v_pk_fma_f32 {v(XX + r, 2)}, {v(g + r, 2)}, {v(D0 + r, 2)}, {v(XX + r, 2)}')
        self.poll2(lambda _: a(f'buffer_load_dwordx4 {v(RG, 4)}, v{VZ5}, {W}, s{SE2W} offen sc1'), lambda: self.chk_sent([RG], t0))
        self.stamp(10)
        a(f'''{M16} {v(D0, 4)}, {v(MSK, 4)}, {v(RG, 4)}, 0
s_cmp_eq_u32 s{SOo}, 0
s_cselect_b32 s3, 0, {OOB}
s_mov_b64 exec, 1
buffer_store_dword v{PK + 2}, v{V16}, {W}, s3 offen sc1
s_mov_b64 exec, -1''')
        fma(GA)

        def z7(_):
            for n in range(7):
                a(f'buffer_load_dwordx4 {v(BH + 4 * n, 4)}, v{V16}, {W}, s{(SZ7, SE2R)[n >> 2]} offen offset:{(n & 3) * 1024} sc1')
        self.poll2(z7, lambda: self.chk_sent([BH + 2 * n for n in range(14)], t0))
        self.stamp(11)
        for n in range(7):
            a(f'{M16} {v(D0, 4)}, {v(MSK, 4)}, {v(BH + 4 * n, 4)}, {v(D0, 4) if n else 0}')
        fma(GB)
        self.cvt(U, XX, 2)
        a(f's_mov_b64 exec, 0x00ff00ff\nbuffer_store_dwordx2 {v(U, 2)}, v{VO}, {s(OUT, 4)}, s{SOo} offen')
        self.end()


from gen2a import role_a
G2.role_a = role_a


def make(**kw):
    ref = open(f'cdna_kernels/{NAME}.s.ref').read().split('\n')
    i0 = next(i for i, l in enumerate(ref) if l.startswith(KN + ':'))
    i1 = next(i for i, l in enumerate(ref) if l.startswith('s_endpgm'))
    head = [('; @launch grid=(256,1,1) block=(256,1,1) lds=163840' if l.startswith('; @launch') else l)
            for l in ref[:i0 + 1]]
    tail = '\n'.join(ref[i1 + 1:]).replace('next_free_vgpr 256', 'next_free_vgpr 512')
    return '\n'.join(head) + '\n' + G2(**kw).body() + '\n' + tail
```

```python
from gen2 import *


def role_a(self):
    a, va, sa, vr, o = self.a, self.va, self.sa, self.vr, self.o
    self.begin()
    XS, CKV, TA, TB = 8, 20, 24, 28
    LP, LQB = 65536, 131072
    a('Lrole_a:')
    self.pend = []
    self.srd(CKV, 8, 16777216); self.srd(XS, 0, 2048)
    a('\n'.join(self.pend))
    vq = VQ(a)
    t0 = va([(4, 2, 2)])
    a(f'v_xor_b32 v{t0}, v{t0}, v{self.fld(0, 4)}')
    VD = vr(4)
    va([(4, 2, 1024), (t0, 16)], d=VD)
    for n in range(1, 4):
        a(f'v_xor_b32 v{VD + n}, {128 * (n & 1) + 16 * (n >> 1)}, v{VD}\nv_add_u32 v{VD + n}, {3072 * n}, v{VD + n}')
    SO = sa([(0, 3, 16 * 131072), (3, 4, 131072), (8, 2, 32768)])
    SM = sa([(8, 2, 8192)])
    S1 = self.sr()
    thr = o.get('thr', 0)

    def chunk(i):
        for hf in range(2):
            a(f's_add_u32 m0, s{SM}, {i * 32768 + hf * 4096}\ns_add_u32 s{S1}, s{SO}, {hf * 16384 + i * 256}')
            for n in range(4):
                vq(f'buffer_load_dwordx4 v{VD + n}, {s(CKV, 4)}, s{S1} offen offset:{1024 * n} nt lds', ('c', i, hf))
            if 2 * i + hf < thr:
                vq.wait(('c', i, hf))
    NEG, SH1 = vr(4), [self.sr() for _ in range(8)]
    VH1, VE7, SE7 = vr(), vr(), self.sr()

    def clr_addr():
        va([(4, 2, 524288), (0, 4, 16)], d=VH1)
        sa([(8, 2, 32768), (0, 3, 4096), (3, 4, 256)], H1, SH1[0])
        for i in range(1, 8):
            a(f's_add_u32 s{SH1[i]}, s{SH1[0]}, {(16 * (i >> 2) + (i & 3)) * 131072}')
        va([(1, 1, 64), (4, 2, 16), (0, 1, 8), (2, 2, 7168)], d=VE7)
        sa([(8, 2, 4 * 7168), (0, 3, 896), (3, 3, 128)], E7, SE7)
        a(f's_sub_u32 s3, s{ST}, 8\ns_cmp_lt_u32 s3, 7\ns_cselect_b32 s{SE7}, s{SE7}, {OOB}')
        a(f'v_mov_b64 {v(NEG, 2)}, -1\nv_mov_b64 {v(NEG + 2, 2)}, -1')

    def clears(pos):
        if o.get('clrpos', 1) == pos:
            for i in range(8):
                vq(f'buffer_store_dwordx4 {v(NEG, 4)}, v{VH1}, {W}, s{SH1[i]} offen sc1')
            vq(f'buffer_store_dwordx2 {v(NEG, 2)}, v{VE7}, {W}, s{SE7} offen sc1', 'clr')
    if o.get('clrpos', 1) == 0:
        clr_addr()
    a(f's_waitcnt lgkmcnt(0)\ns_load_dword s{TAG}, {s(WS, 2)}, 0')
    clears(0)
    chunk(0)
    if o.get('clrpos', 1) != 0:
        clr_addr()
    AK, AQ, AV = vr(8), vr(8), vr(4)
    va([(0, 3, 2), (3, 1, 1)], d=t0)
    a(f'v_xor_b32 v{t0}, v{t0}, v{self.fld(5, 1)}')
    va([(0, 5, 256), (t0, 16)], d=t0)
    t1 = vr()
    for i in range(8):
        a(f'v_xor_b32 v{t1}, {32 * i}, v{t0}\nv_add_u32 v{AK + i}, s{SM}, v{t1}\nv_add_u32 v{AQ + i}, {LQB}, v{t1}')
    va([(6, 2, 4), (1, 1, 1)], d=t0); va([(4, 1, 8), (2, 2, 2)], d=t1)
    a(f'v_xor_b32 v{t0}, v{t0}, v{t1}')
    va([(5, 1, 4096), (4, 1, 1024), (2, 2, 256), (t0, 16), (0, 1, 8)], d=AV)
    for i in range(1, 4):
        a(f'v_xor_b32 v{AV + i}, {32 * (i >> 1) + 2064 * (i & 1)}, v{AV}')
    V16 = va([(0, 6, 16)])
    VPW = va([(V16, 1), (6, 2, 2048)], LP)
    VPR = va([(4, 2, 512), (0, 4, 16)], LP)
    VMW = va([(V16, 1), (6, 2, 4)], LP + 8192)
    VMR = va([(0, 5, 16)], LP + 8192)
    SQ = sa([(2, 1, 32768), (8, 2, 8192)], E3)
    SF = sa([(0, 3, 128)], FLAG)
    SFG = 16
    a(f's_add_u32 s{SFG}, s{SF}, 2048')
    VQW = va([(V16, 1), (6, 2, 8192)], LQB)
    SGS = sa([(0, 3, 8192), (3, 4, 512)], GATE)
    a(f's_cmp_eq_u32 s{SW}, 0\ns_cselect_b32 s{SGS}, s{SGS}, {OOB}')
    SK = 32
    a(f's_mov_b32 s{SK}, {f32(128 ** -0.5 * math.log2(math.e))}')
    VTA, VTB = vr(), vr()
    STA, STB, SSA, SSB = 12, 13, 14, 15
    keep = dict(self.f)
    self.pend = []
    a(f's_cmp_ge_u32 s{ST}, 8\ns_cbranch_scc1 La_tf')
    self.srd(TA, 40, 4194304); self.srd(TB, 40, 4194304)
    a('\n'.join(self.pend))
    va([(4, 2, 2)], d=t0)
    a(f'v_xor_b32 v{t0}, v{t0}, v{self.fld(0, 3)}')
    va([(3, 3, 1024), (t0, 16)], d=VTA)
    sa([(0, 3, 524288), (8, 2, 65536), (3, 3, 128)], 0, STA)
    a(f'v_mov_b32 v{VTB}, v{VTA}\ns_add_u32 s{STB}, s{STA}, 262144\ns_movk_i32 s{SSA}, 8192\ns_movk_i32 s{SSB}, 8192\ns_branch La_tj\nLa_tf:')
    self.f = dict(keep); self.pend = []
    self.srd(TA, 56, 1835008); self.srd(TB, 64, 1835008)
    a('\n'.join(self.pend))
    va([(5, 1, 2)], d=t0)
    a(f'v_xor_b32 v{t0}, v{t0}, v{self.fld(0, 2)}')
    va([(t0, 16), (2, 4, 3584)], d=VTA)
    va([(4, 2, 4)], d=t0)
    a(f'v_xor_b32 v{t0}, v{t0}, v{self.fld(0, 4)}')
    va([(t0, 16), (4, 2, 1024)], d=VTB)
    sa([(8, 2, 128 * 3584), (0, 3, 448), (3, 3, 64)], 0, STA)
    sa([(0, 3, 7 * 32768), (3, 3, 32768), (8, 2, 256)], 0, STB)
    a(f'''s_mov_b32 s{SSA}, {16 * 3584}
s_movk_i32 s{SSB}, 4096
s_cmp_eq_u32 s{ST}, 15
s_cselect_b32 s{STA}, {OOB}, s{STA}
s_cselect_b32 s{STB}, {OOB}, s{STB}
La_tj:''')
    self.f = dict(keep)

    def tail(n):
        h = n >> 3
        a(f's_mov_b32 s{S1}, s{(STA, STB)[h]}' if n & 7 == 0 else f's_add_u32 s{S1}, s{S1}, s{(SSA, SSB)[h]}')
        a(f's_add_u32 m0, s{SM}, {h * 32768 + (n & 7) * 1024}')
        vq(f'buffer_load_dwordx4 v{(VTA, VTB)[h]}, {s((TA, TB)[h], 4)}, s{S1} offen nt lds')
    chunk(1)
    GV = vr(4)
    a(f's_waitcnt lgkmcnt(0)\ns_add_u32 s{TAG}, s{TAG}, {PHI:#x}\nv_mov_b32 v{GV + 2}, s{TAG}\nv_mov_b32 v{GV + 3}, s{TAG}')

    def reads(i):
        hi = (i & 1) * 32768
        self.preread([f'ds_read_b128 {ag(32 * i + 4 * k, 4)}, v{AK + k} offset:{hi}' for k in range(8)] +
                     [f'ds_read_b64_tr_b16 {ag(128 + 32 * i + 16 * T + 4 * ks + 2 * e, 2)}, v{AV + 2 * T + e} offset:{hi + ks * 8192}'
                      for T in range(2) for ks in range(4) for e in range(2)])
        a('s_waitcnt lgkmcnt(0)')
        if i == 1:
            for r in list(range(AK, AK + 8)) + list(range(AV, AV + 4)):
                a(f'v_add_u32 v{r}, 0x10000, v{r}')

    for i in range(3):
        vq.wait(('c', i, 1))
        a('s_barrier')
        if i != 1:
            self.stamp(13 + i // 2)
        if i < 2:
            chunk(i + 2)
        if i == 1:
            clears(1)
        reads(i)
    a(f's_add_u32 s{S1}, s{SQ}, 4096')
    mark = self.nv
    QR = vr(32)
    vq.wait(('c', 3, 1))
    a('s_barrier')
    self.stamp(15)
    self.poll2(lambda so: a(f'buffer_load_dwordx4 {v(QR, 4)}, off, {W}, s{so} sc1'),
               lambda: self.chk_tag([QR + i for i in range(4)], t0), lambda: reads(3), (SF, SFG))
    self.stamp(1)
    self.pollm([(f'buffer_load_dwordx4 {v(QR + 4 * n, 4)}, v{V16}, {W}, s{(SQ, S1)[n >> 2]} offen offset:{(n & 3) * 1024}', QR + 4 * n)
                for n in range(8)], t0, first=' sc1' if o.get('qsc', 0) else '')
    self.stamp(11)
    for n in range(8):
        a(f'ds_write_b128 v{VQW}, {v(QR + 4 * n, 4)} offset:{1024 * n}')
    vq.q = []
    clears(2)
    self.nv = mark
    a(f's_cmp_lt_u32 s{ST}, 8\ns_cselect_b64 vcc, -1, 0\ns_waitcnt lgkmcnt(0)\ns_barrier')
    self.stamp(2)
    SA, QF, CH = vr(16), vr(24), vr()
    q = LQ(a)
    tw = o.get('tw', 8)

    def rdq(t):
        q.issue(f'ds_read_b128 {v(QF + 4 * (t % 6), 4)}, v{AQ + t % 8} offset:{8192 * (t // 8)}', t)
    for t in range(4):
        rdq(t)
    for t in range(32):
        q.wait(t)
        a(f'{M32} {v(SA, 16)}, {ag(4 * t, 4)}, {v(QF + 4 * (t % 6), 4)}, {v(SA, 16) if t else 0}')
        if t + 4 < 32:
            rdq(t + 4)
        if t & 1 == 0 and t // 2 < tw:
            a(f's_cbranch_vccz La_nt{t}')
            tail(t // 2)
            a(f'La_nt{t}:')
    U = vr(8)
    a(f'v_max3_f32 v{t0}, v{SA}, v{SA + 1}, v{SA + 2}\nv_max3_f32 v{t1}, v{SA + 3}, v{SA + 4}, v{SA + 5}')
    for i in (6, 10):
        a(f'v_max3_f32 v{t0}, v{t0}, v{SA + i}, v{SA + i + 1}\nv_max3_f32 v{t1}, v{t1}, v{SA + i + 2}, v{SA + i + 3}')
    a(f'''v_max3_f32 v{t0}, v{t0}, v{SA + 14}, v{SA + 15}
v_max_f32 v{t0}, v{t0}, v{t1}
ds_write_b32 v{VMW}, v{t0}
s_waitcnt lgkmcnt(0)
s_barrier''')
    self.stamp(3)
    a(f'''ds_read_b128 {v(U, 4)}, v{VMR}
ds_read_b128 {v(U + 4, 4)}, v{VMR} offset:512
s_waitcnt lgkmcnt(1)
v_max3_f32 v{t0}, v{U}, v{U + 1}, v{U + 2}
s_waitcnt lgkmcnt(0)
v_max3_f32 v{t0}, v{t0}, v{U + 3}, v{U + 4}
v_max3_f32 v{t0}, v{t0}, v{U + 5}, v{U + 6}
v_max_f32 v{t0}, v{t0}, v{U + 7}
v_mul_f32 v{GV}, s{SK}, v{t0}''')
    for hf in range(2):
        for i in range(8 * hf, 8 * hf + 8, 2):
            a(f'v_pk_fma_f32 {v(SA + i, 2)}, {v(SA + i, 2)}, {s(SK, 2)}, {v(GV, 2)} op_sel_hi:[1,0,0] neg_lo:[0,0,1] neg_hi:[0,0,1]')
        for i in range(8):
            a(f'v_exp_f32 v{SA + 8 * hf + i}, v{SA + 8 * hf + i}')
        self.cvt(QF + 4 * hf, SA + 8 * hf, 4)
        a(f'ds_write_b128 v{VPW}, {v(QF + 4 * hf, 4)} offset:{1024 * hf}')
    for n in (8, 4, 2):
        for i in range(0, n, 2):
            a(f'v_pk_add_f32 {v(SA + i, 2)}, {v(SA + i, 2)}, {v(SA + n + i, 2)}')
    a(f'v_add_f32 v{t0}, v{SA}, v{SA + 1}\nds_write_b32 v{VMW}, v{t0} offset:1024')
    if o.get('clrpos', 1) == 2:
        a('s_waitcnt vmcnt(0)')
    a('s_waitcnt lgkmcnt(0)\ns_barrier')
    self.stamp(4)
    mark = self.nv
    PF, DA, PK = vr(32), vr(64), vr(32)
    for u in range(8):
        q.issue(f'ds_read_b128 {v(PF + 4 * u, 4)}, v{VPR} offset:{2048 * (u & 3) + 256 * (u >> 2)}', u)
        if u == 3:
            q.issue(f'ds_read_b128 {v(U, 4)}, v{VMR} offset:1024')
            q.issue(f'ds_read_b128 {v(U + 4, 4)}, v{VMR} offset:1536', 'l')
    ev = {}
    for hh in range(2):
        for tp in range(4):
            d = DA + 32 * hh + 8 * tp
            m = 32 * hh + 8 * tp + 12
            for r in range(4):
                ev.setdefault(m + r // 2, []).append(f'v_cvt_pk_bf16_f32 v{PK + 16 * hh + 4 * r + tp}, v{d + r}, v{d + 4 + r}')
            for r in range(4):
                if tp == 0:
                    ev.setdefault(m + 2 + r // 2, []).append(f'v_min_u32 v{PK + 16 * hh + 4 * r}, -2, v{PK + 16 * hh + 4 * r}')
                if tp == 3:
                    ev.setdefault(m + 2 + r, []).append(f'buffer_store_dwordx4 {v(PK + 16 * hh + 4 * r, 4)}, v{VH1}, {W}, s{SH1[4 * hh + r]} offen sc1')
    ev.setdefault(o.get('gatepos', 10), []).append(
        f's_mov_b32 exec_hi, 0\nbuffer_store_dwordx4 {v(GV, 4)}, v{V16}, {W}, s{SGS} offen sc1\ns_mov_b64 exec, -1')
    for m in range(64):
        hh, tp, ks, T = m >> 5, (m >> 3) & 3, (m >> 1) & 3, m & 1
        q.wait(4 * hh + ks)
        d = v(DA + 32 * hh + 8 * tp + 4 * T, 4)
        a(f'{M16} {d}, {v(PF + 16 * hh + 4 * ks, 4)}, {ag(128 + 32 * tp + 16 * T + 4 * ks, 4)}, {d if ks else 0}')
        if m == 7:
            q.wait('l')
            a(f'v_pk_add_f32 {v(U, 2)}, {v(U, 2)}, {v(U + 2, 2)}\nv_pk_add_f32 {v(U + 4, 2)}, {v(U + 4, 2)}, {v(U + 6, 2)}')
        if m == 8:
            a(f'v_pk_add_f32 {v(U, 2)}, {v(U, 2)}, {v(U + 4, 2)}\nv_add_f32 v{GV + 1}, v{U}, v{U + 1}')
        a('\n'.join(ev.pop(m, [])))
    self.stamp(5)
    for m in sorted(ev):
        a('\n'.join(ev[m]))
    self.stamp(6)
    a(f's_cmp_lg_u32 s{ST}, 15\ns_cbranch_scc1 La_tail')
    self.end()
    a(f'La_tail:\ns_cmp_lt_u32 s{ST}, 8\ns_cbranch_scc1 La_tail2')
    for n in range(tw):
        tail(n)
    a('La_tail2:')
    for n in range(tw, 16):
        tail(n)
    self.nv = mark
    SEL = self.sel(8, 0x3f80, self.fld(1, 3))
    D0, RG, A1 = SA, QF, vr(64)
    LCB, LST, LF = 98304, 102400, 103424
    VHR = va([(4, 2, 16), (0, 1, 1056)], LCB)
    keep = dict(self.f); mark = self.nv

    def gemv16(BH):
        q = LQ(a)
        rg = lambda k: BH + 4 * (k % 12)
        for k in range(12):
            q.issue(f'ds_read_b128 {v(rg(k), 4)}, v{VHR} offset:{k * 64}', k)
        for k in range(16):
            q.wait(k)
            a(f'{M16} {v(D0 + 4, 4)}, {v(A1 + 4 * k, 4)}, {v(rg(k), 4)}, {v(D0 + 4, 4) if k else 0}')
            if 1 <= k <= 4:
                q.issue(f'ds_read_b128 {v(rg(k + 11), 4)}, v{VHR} offset:{(k + 11) * 64}', k + 11)
    a(f's_cmp_ge_u32 s{ST}, 8\ns_cbranch_scc1 Lrole_f')
    a(f'v_xor_b32 v{t0}, v{self.fld(3, 2)}, v{self.fld(6, 2)}')
    VAO = va([(5, 1, 2048), (4, 1, 512), (2, 2, 128), (t0, 32), (0, 2, 8)])
    VCW = va([(6, 2, 256), (5, 1, 128), (3, 1, 64), (1, 1, 32), (4, 1, 16), (0, 1, 8), (2, 1, 1056)], LCB)
    VE5 = va([(4, 2, 16)])
    SB0 = sa([(0, 3, 8192), (8, 2, 2048)], H2L, SH1[0])
    SE5 = sa([(0, 3, 2048), (3, 3, 256), (8, 2, 64)], E5, SH1[2])
    a(f's_add_u32 s{SH1[1]}, s{SB0}, {H2G - H2L}\ns_waitcnt vmcnt(0)\ns_barrier')
    self.stamp(7)
    self.preread([f'ds_read_b64_tr_b16 {v(A1 + 4 * k + 2 * e, 2)}, v{VAO} offset:{k * 4096 + e * 1024}' for k in range(16) for e in range(2)])

    def l2(so):
        for i in range(2):
            a(f'buffer_load_dwordx4 {v(RG + 4 * i, 4)}, v{V16}, {W}, s{so} offen offset:{1024 * i} sc1')
    self.poll2(l2, lambda: self.chk_sent([RG, RG + 4], t0), None, (SB0, SH1[1]))
    self.stamp(8)
    for i in range(2):
        a(f'{M16} {v(D0, 4)}, {v(SEL + 4 * i, 4)}, {v(RG + 4 * i, 4)}, {v(D0, 4) if i else 0}')
    self.cvt(U, D0, 2)
    a(f'ds_write_b64 v{VCW}, {v(U, 2)}\ns_waitcnt lgkmcnt(0)\ns_barrier')
    gemv16(vr(48))
    self.cvt(U, D0 + 4, 2)
    a(f'v_mov_b32_dpp v{U + 2}, v{U} row_shl:1 {DPPM}\nv_mov_b32_dpp v{U + 3}, v{U + 1} row_shl:1 {DPPM}')
    self.execm(0x00010001)
    a(f'v_min_u32 v{U}, -2, v{U}\nbuffer_store_dwordx4 {v(U, 4)}, v{VE5}, {W}, s{SE5} offen sc1')
    self.stamp(10)
    self.end()
    a('Lrole_f:')
    self.f = keep; self.nv = mark
    VXO = va([(6, 2, 256), (5, 1, 128), (0, 4, 8)])
    VHW = va([(VXO, 1), (4, 1, 1056)], LCB)
    va([(VXO, 1), (4, 1, 1024)], d=VXO)
    VMO = va([(6, 2, 512), (5, 1, 256), (3, 1, 128), (4, 1, 64), (0, 3, 8)])
    VE5G = va([(4, 2, 2048), (6, 2, 512), (0, 4, 16)])
    a(f'v_xor_b32 v{t0}, v{self.fld(4, 1)}, v{self.fld(6, 1)}')
    VA64 = va([(4, 2, 512), (2, 2, 64), (t0, 32), (0, 2, 8)])
    VA2 = va([(6, 2, 8192), (4, 2, 2048), (0, 2, 8), (2, 2, 320)], 32768)
    VSTW = va([(4, 1, 32), (5, 1, 16), (6, 2, 4)], LST)
    VSTR = va([(4, 1, 32)], LST)
    VFW = va([(4, 2, 8), (6, 2, 32), (0, 1, 96)], LF)
    VFR = va([(4, 2, 16), (0, 1, 96)], LF)
    GA, SB, CB, XX = AK, AK + 4, AQ, AQ + 4
    a(f's_mov_b32 s{SH1[0]}, {MOD2}\ns_mov_b32 s{SH1[1]}, {MOD2 + 4096}\ns_mov_b32 s{SH1[2]}, {E5}\ns_mov_b32 s{SH1[3]}, {E5 + 8192}')
    for i in range(32):
        a(f'v_accvgpr_write_b32 a{32 + i}, 0')
    a(f'buffer_load_dwordx2 {v(RG + 6, 2)}, v{VXO}, {s(XS, 4)}, 0 offen')
    self.poll2(lambda _: a(f'''buffer_load_dwordx2 {v(RG, 2)}, v{VMO}, {W}, s{SH1[0]} offen sc1
buffer_load_dwordx2 {v(RG + 2, 2)}, v{VMO}, {W}, s{SH1[0]} offen offset:2048 sc1
buffer_load_dwordx2 {v(RG + 4, 2)}, v{VMO}, {W}, s{SH1[1]} offen sc1'''), lambda: self.chk_sent([RG, RG + 2, RG + 4], t0))
    a('s_barrier')
    self.stamp(7)
    for T in range(8):
        a(f'v_xor_b32 v{U + T}, {32 * T}, v{VA2}')
    self.preread([f'ds_read_b64_tr_b16 {v(A1 + 4 * k + 2 * e, 2)}, v{VA64} offset:{k * 2048 + e * 256}' for k in range(16) for e in range(2)] +
                 [f'ds_read_b64_tr_b16 {ag(4 * T + 2 * e, 2)}, v{U + T} offset:{e * 1024}' for T in range(8) for e in range(2)])
    self.unpack4(GA, RG); self.unpack4(SB, RG + 2); self.unpack4(CB, RG + 4); self.unpack4(XX, RG + 6)
    for r in range(4):
        a(f'v_add_f32 v{CB + r}, 1.0, v{CB + r}')
    a('s_waitcnt lgkmcnt(0)')

    def l5(_):
        for i in range(4):
            a(f'buffer_load_dwordx4 {v(RG + 4 * i, 4)}, v{VE5G}, {W}, s{SH1[2 + (i >> 1)]} offen offset:{256 * (i & 1)} sc1')
    self.poll2(l5, lambda: self.chk_sent([RG + 4 * i for i in range(4)], t0))
    self.stamp(8)
    for i in range(4):
        a(f'{M16} {v(D0, 4)}, {v(SEL + 4 * (i & 1), 4)}, {v(RG + 4 * i, 4)}, {v(D0, 4) if i else 0}')
    x0, x2, u0, u2, u4, u6 = v(XX, 2), v(XX + 2, 2), v(U, 2), v(U + 2, 2), v(U + 4, 2), v(U + 6, 2)
    a(f'''v_pk_fma_f32 {x0}, {v(GA, 2)}, {v(D0, 2)}, {x0}
v_pk_fma_f32 {x2}, {v(GA + 2, 2)}, {v(D0 + 2, 2)}, {x2}
v_pk_mul_f32 {u0}, {x0}, {x0}
v_pk_add_f32 {u2}, {x0}, {x2}
v_pk_fma_f32 {u0}, {x2}, {x2}, {u0}
v_add_f32 v{U + 2}, v{U + 2}, v{U + 3}
v_add_f32 v{U}, v{U}, v{U + 1}
v_permlane32_swap_b32 v{U + 2}, v{U}
v_add_f32 v{U}, v{U + 2}, v{U}''')
    self.red16('v_add_f32', (U,))
    a(f'''ds_write_b32 v{VSTW}, v{U}
s_waitcnt lgkmcnt(0)
s_barrier
ds_read_b128 {v(U, 4)}, v{VSTR}
ds_read_b128 {v(U + 4, 4)}, v{VSTR} offset:16
s_waitcnt lgkmcnt(1)
v_pk_add_f32 {u0}, {u0}, {u2}
s_waitcnt lgkmcnt(0)
v_pk_add_f32 {u4}, {u4}, {u6}
v_add_f32 v{U}, v{U}, v{U + 1}
v_add_f32 v{U + 4}, v{U + 4}, v{U + 5}
v_mul_f32 v{U}, {f32(1 / 512)}, v{U}
v_mul_f32 v{U + 4}, {f32(1 / 512)}, v{U + 4}
v_fma_f32 v{U + 4}, -v{U}, v{U}, v{U + 4}
v_max_f32 v{U + 4}, 0, v{U + 4}
v_add_f32 v{U + 4}, {f32(1e-5)}, v{U + 4}
v_rsq_f32 v{U + 4}, v{U + 4}
v_pk_add_f32 {x0}, {x0}, {u0} op_sel_hi:[1,0] neg_lo:[0,1] neg_hi:[0,1]
v_pk_add_f32 {x2}, {x2}, {u0} op_sel_hi:[1,0] neg_lo:[0,1] neg_hi:[0,1]
v_pk_mul_f32 {x0}, {x0}, {v(CB, 2)}
v_pk_mul_f32 {x2}, {x2}, {v(CB + 2, 2)}
v_pk_fma_f32 {x0}, {x0}, {u4}, {v(SB, 2)} op_sel_hi:[1,0,1]
v_pk_fma_f32 {x2}, {x2}, {u4}, {v(SB + 2, 2)} op_sel_hi:[1,0,1]''')
    self.cvt(U, XX, 2)
    a(f'ds_write_b64 v{VHW}, {u0}\ns_waitcnt lgkmcnt(0)\ns_barrier')
    self.stamp(9)
    a(f's_cmp_ge_u32 s{SW}, 2\ns_cbranch_scc1 Lf_now1')
    gemv16(vr(48))
    for r in range(4):
        a(f'v_max_f32 v{D0 + 4 + r}, 0, v{D0 + 4 + r}')
    self.cvt(U, D0 + 4, 2)
    a(f'ds_write_b64 v{VFW}, {u0}\ns_waitcnt lgkmcnt(0)\nLf_now1:')
    self.execm(0x00030003)
    a('s_barrier')
    for T in range(8):
        a(f'ds_read_b128 {ag(32 + 4 * T, 4)}, v{VFR}')
        a('s_lshl_b64 exec, exec, 2' if T < 7 else 's_mov_b64 exec, -1')
    for T in range(8):
        a(f's_waitcnt lgkmcnt({7 - T})')
        a(f'{M16} {v(D0, 4)}, {ag(4 * T, 4)}, {ag(32 + 4 * T, 4)}, {v(D0, 4) if T else 0}')
    self.cvt(U, D0, 2)
    a(f'v_min_u32 v{U}, -2, v{U}\nbuffer_store_dwordx2 {u0}, v{VE7}, {W}, s{SE7} offen sc1')
    self.stamp(10)
    self.end()
```

```python
import sys; sys.path.insert(0,'work')
import drv, gen2
for st in (False, True):
    asm = gen2.make(stamps=st, **eval('dict(%s)' % (sys.argv[1] if len(sys.argv) > 1 else '')))
    co = drv.build(asm, 'chk'); print(drv.cl.address_register_problem(co, drv.KN), asm.count('\n'))
    open('k2_st.s' if st else 'k2.s', 'w').write(asm)
```
